```python
import torch

def _softmax(x, axis=-1):
    return torch.softmax(x, dim=axis)
def _gelu(x):
    return torch.nn.functional.gelu(x, approximate="tanh")
def _silu(x):
    return torch.nn.functional.silu(x)
def _sigmoid(x):
    return torch.sigmoid(x)
def _layernorm(x, axis=-1, eps=1e-5):
    m = x.mean(dim=axis, keepdim=True)
    v = x.var(dim=axis, keepdim=True, unbiased=False)
    return (x - m) / torch.sqrt(v + eps)
def _scatter_add(tgt, idx, src, axis=0):
    return tgt.clone().index_add_(axis, idx, src)
def _segment_sum(src, seg, n):
    out = torch.zeros((n,) + src.shape[1:], dtype=src.dtype)
    return out.index_add_(0, seg, src)
def _pad(x, pw):
    flat = tuple(v for pair in reversed(pw) for v in pair)
    return torch.nn.functional.pad(x, flat)

kernel_name = 'concat_heads__gqa_block_cached__mha_block_cached__near_ridge'

def setup_inputs():

    _w = (lambda a: (lambda t: t.to(torch.bfloat16) if t.is_floating_point() else t)(torch.as_tensor(a)))
    def _A_setup():
        B, Sq, D = 16, 32, 512
        Hq, Hkv, Sk, Dh = 32, 8, 512, 128
        assert Hq % Hkv == 0, (Hq, Hkv)
        return {
            "x": _w((lambda *s: torch.randn(*s, dtype=torch.bfloat16) * 0.8)(B, Sq, D)),
            "k_cache": _w((lambda *s: torch.randn(*s, dtype=torch.bfloat16) * 0.8)(B, Hkv, Sk, Dh)),
            "v_cache": _w((lambda *s: torch.randn(*s, dtype=torch.bfloat16) * 0.05)(B, Hkv, Sk, Dh)),
            "wq": _w((lambda *s: torch.randn(*s, dtype=torch.bfloat16) * 0.8)(D, Hq * Dh) * (D ** -0.5)),
            "wo": _w((lambda *s: torch.randn(*s, dtype=torch.bfloat16) * 0.05)(Hq * Dh, D) * ((Hq * Dh) ** -0.5)),
        }
    _A_in = _A_setup()

    def _B_setup():
        B, Sq, D = 16, 32, 512
        H, Sk, Dh = 32, 512, 128
        return {
            "x": _w((lambda *s: torch.randn(*s, dtype=torch.bfloat16) * 0.8)(B, Sq, D)),
            "k_cache": _w((lambda *s: torch.randn(*s, dtype=torch.bfloat16) * 0.8)(B, H, Sk, Dh)),
            "v_cache": _w((lambda *s: torch.randn(*s, dtype=torch.bfloat16) * 0.05)(B, H, Sk, Dh)),
            "wq": _w((lambda *s: torch.randn(*s, dtype=torch.bfloat16) * 0.8)(D, H * Dh) * (D ** -0.5)),
            "wo": _w((lambda *s: torch.randn(*s, dtype=torch.bfloat16) * 0.05)(H * Dh, D) * ((H * Dh) ** -0.5)),
        }
    _B_in = _B_setup()

    return {
        "A_x": _A_in["x"],
        "A_k_cache": _A_in["k_cache"],
        "A_v_cache": _A_in["v_cache"],
        "A_wq": _A_in["wq"],
        "A_wo": _A_in["wo"],
        "B_x": _B_in["x"],
        "B_k_cache": _B_in["k_cache"],
        "B_v_cache": _B_in["v_cache"],
        "B_wq": _B_in["wq"],
        "B_wo": _B_in["wo"],
    }

def reference(A_x, A_k_cache, A_v_cache, A_wq, A_wo, B_x, B_k_cache, B_v_cache, B_wq, B_wo):
    def _A_ref(x, k_cache, v_cache, wq, wo):
        B, Sq, D = x.shape
        Hq, Dh = 32, 128
        Hkv = k_cache.shape[1]
        rep = Hq // Hkv
        q = (lambda x, *d: x.permute(*d))((x @ wq).reshape(B, Sq, Hq, Dh), 0, 2, 1, 3)
        k = (lambda x, n, axis: torch.repeat_interleave(x, n, dim=axis))(k_cache, rep, axis=1)
        v = (lambda x, n, axis: torch.repeat_interleave(x, n, dim=axis))(v_cache, rep, axis=1)
        scores = torch.einsum("bhqd,bhkd->bhqk", q, k) * (Dh ** -0.5)
        p = _softmax(scores, axis=-1)
        o = torch.einsum("bhqk,bhkd->bhqd", p, v)
        return (lambda x, *d: x.permute(*d))(o, 0, 2, 1, 3).reshape(B, Sq, Hq * Dh) @ wo

    def _B_ref(x, k_cache, v_cache, wq, wo):
        B, Sq, D = x.shape
        H, Dh = 32, 128
        q = (lambda x, *d: x.permute(*d))((x @ wq).reshape(B, Sq, H, Dh), 0, 2, 1, 3)
        scores = torch.einsum("bhqd,bhkd->bhqk", q, k_cache) * (Dh ** -0.5)
        p = _softmax(scores, axis=-1)
        o = torch.einsum("bhqk,bhkd->bhqd", p, v_cache)
        return (lambda x, *d: x.permute(*d))(o, 0, 2, 1, 3).reshape(B, Sq, H * Dh) @ wo

    a = _A_ref(A_x, A_k_cache, A_v_cache, A_wq, A_wo)
    b = _B_ref(B_x, B_k_cache, B_v_cache, B_wq, B_wo)
    return torch.concatenate([a, b], axis=-1)
```

```python
def R(kind, lo, n=1):
    return [(kind, lo + i) for i in range(n)]

def rs(kind, lo, n=1):
    return f"{kind}{lo}" if n == 1 else f"{kind}[{lo}:{lo+n-1}]"

class Ins:
    __slots__ = ("text", "kind", "w", "r", "c", "ws", "passes", "sdata")
    def __init__(self, text, kind, w=(), r=(), c=(), ws=1, passes=0, sdata=()):
        self.text, self.kind = text, kind
        self.w, self.r, self.c = list(w), list(r), list(c)
        self.ws, self.passes, self.sdata = ws, passes, list(sdata)

VALU_KINDS = ("valu", "trans", "perml", "rfl", "dpp")

class Gen:
    def __init__(self):
        self.out = []
        self.reset_state()

    def reset_state(self):
        self.pos = 0
        self.valu_w = {}
        self.trans_w = {}
        self.mfma_w = {}
        self.mfma_c = {}
        self.store_d = {}
        self.m0_w = -100
        self.vm_issued = 0
        self.vm_done = 0
        self.lg_issued = 0
        self.lg_done = 0

    def raw(self, text):
        self.out.append(text)

    def label(self, name):
        self.out.append(f"{name}:")

    def comment(self, t):
        self.out.append(f"    ; {t}")

    def _need(self, ins):
        need = 0
        def req(p, d):
            nonlocal need
            gap = self.pos - p - 1
            if d - gap > need:
                need = d - gap
        k = ins.kind
        reads = ins.r + ins.c
        MF_RD = {2: 5, 4: 8, 8: 12, 16: 20}
        MF_OV = {2: 4, 4: 6, 8: 10, 16: 18}
        MF_WAR = {2: 1, 4: 3, 8: 7, 16: 15}
        if k == "mfma":
            for x in reads:
                if x in self.valu_w: req(self.valu_w[x], 2)
            for x in ins.r:
                if x in self.mfma_w:
                    p, ps, _ = self.mfma_w[x]; req(p, MF_RD[ps])
            for x in ins.c:
                if x in self.mfma_w:
                    p, ps, dt = self.mfma_w[x]
                    if dt == tuple(ins.c) and ps == ins.passes:
                        req(p, 2 if ps == 2 else 0)
                    else:
                        req(p, MF_OV[ps])
            for x in ins.w:
                if x in self.mfma_w and x not in ins.c:
                    p, ps, dt = self.mfma_w[x]; req(p, MF_RD[ps])
        else:
            if k in VALU_KINDS or k in ("vload", "vstore", "dsr", "dsw", "ldsdma"):
                for x in reads + ins.w:
                    if x in self.mfma_w:
                        p, ps, _ = self.mfma_w[x]; req(p, MF_RD[ps])
            if k in VALU_KINDS:
                for x in ins.w:
                    if x in self.mfma_c:
                        p, ps = self.mfma_c[x]; req(p, MF_WAR[ps])
                    if x in self.store_d: req(self.store_d[x], 2)
                for x in reads:
                    if x[0] == "s" and x in self.valu_w: req(self.valu_w[x], 2)
                if k != "trans":
                    for x in reads:
                        if x in self.trans_w: req(self.trans_w[x], 1)
                if k in ("perml", "dpp"):
                    for x in reads:
                        if x in self.valu_w: req(self.valu_w[x], 2)
                if k == "rfl":
                    for x in reads:
                        if x in self.valu_w: req(self.valu_w[x], 1)
            if k in ("vload", "dsr"):
                for x in ins.w:
                    if x in self.store_d: req(self.store_d[x], 1)
            if k in ("vload", "vstore", "ldsdma"):
                for x in reads:
                    if x[0] == "s" and x in self.valu_w: req(self.valu_w[x], 5)
            if k in ("vload", "vstore", "dsr", "dsw", "ldsdma"):
                for x in reads:
                    if x in self.trans_w: req(self.trans_w[x], 1)
            if k == "ldsdma":
                req(self.m0_w, 1)
            if k == "salu":
                for x in reads:
                    if x[0] == "s" and x in self.valu_w: req(self.valu_w[x], 1)
        return need

    def emit(self, ins):
        n = self._need(ins)
        while n > 0:
            m = min(n, 16)
            self.out.append(f"    s_nop {m-1}")
            self.pos += m
            n -= m
        self.out.append("    " + ins.text)
        p = self.pos
        k = ins.kind
        for x in ins.w:
            self.valu_w.pop(x, None); self.trans_w.pop(x, None); self.mfma_w.pop(x, None)
        if k in VALU_KINDS:
            for x in ins.w:
                self.valu_w[x] = p
                if k == "trans": self.trans_w[x] = p
        elif k == "mfma":
            for x in ins.w: self.mfma_w[x] = (p, ins.passes, tuple(ins.w))
            for x in ins.c: self.mfma_c[x] = (p, ins.passes)
        if ins.sdata:
            for x in ins.sdata: self.store_d[x] = p
        if k == "salu" and ("m0", 0) in ins.w:
            self.m0_w = p
        self.pos += ins.ws
        tok = None
        if k in ("vload", "vstore", "ldsdma"):
            tok = self.vm_issued
            self.vm_issued += 1
            assert self.vm_issued - self.vm_done <= 63, "too many outstanding VMEM ops"
        elif k in ("dsr", "dsw"):
            tok = self.lg_issued
            self.lg_issued += 1
        return tok

    def wait_vm(self, tok):
        if tok < self.vm_done: return
        n = self.vm_issued - 1 - tok
        self.emit(Ins(f"s_waitcnt vmcnt({n})", "wait"))
        self.vm_done = tok + 1

    def wait_lg(self, tok):
        if tok < self.lg_done: return
        n = self.lg_issued - 1 - tok
        n = min(n, 15)
        self.emit(Ins(f"s_waitcnt lgkmcnt({n})", "wait"))
        self.lg_done = self.lg_issued - n

    def wait_all(self):
        self.emit(Ins("s_waitcnt vmcnt(0) lgkmcnt(0)", "wait"))
        self.vm_done = self.vm_issued
        self.lg_done = self.lg_issued

    def outstanding(self):
        return self.vm_issued - self.vm_done

    def salu(self, text, w=(), r=()):
        return self.emit(Ins(text, "salu", w, r))

    def valu(self, text, w=(), r=(), kind="valu"):
        return self.emit(Ins(text, kind, w, r))

    def mfma16(self, d, a, b, c):
        ct = "0" if c is None else rs(c[0], c[1], 4)
        return self.emit(Ins(
            f"v_mfma_f32_16x16x32_bf16 {rs(d[0], d[1], 4)}, {rs(a[0], a[1], 4)}, {rs(b[0], b[1], 4)}, {ct}",
            "mfma", w=R(d[0], d[1], 4), r=R(a[0], a[1], 4) + R(b[0], b[1], 4),
            c=([] if c is None else R(c[0], c[1], 4)), passes=4))

    def bload(self, dst, n, voff, srd, soff, imm=0, flags=""):
        op = {1: "buffer_load_dword", 2: "buffer_load_dwordx2", 4: "buffer_load_dwordx4"}[n]
        t = f"{op} {rs(dst[0], dst[1], n)}, v{voff}, s[{srd}:{srd+3}], {soff} offen"
        if imm: t += f" offset:{imm}"
        if flags: t += " " + flags
        r = [("v", voff)] + R("s", srd, 4)
        if soff.startswith("s"): r.append(("s", int(soff[1:])))
        return self.emit(Ins(t, "vload", w=R(dst[0], dst[1], n), r=r))

    def bstore(self, src, n, voff, srd, soff, imm=0, flags=""):
        op = {1: "buffer_store_dword", 2: "buffer_store_dwordx2", 4: "buffer_store_dwordx4"}[n]
        t = f"{op} {rs(src[0], src[1], n)}, v{voff}, s[{srd}:{srd+3}], {soff} offen"
        if imm: t += f" offset:{imm}"
        if flags: t += " " + flags
        r = [("v", voff)] + R("s", srd, 4) + R(src[0], src[1], n)
        if soff.startswith("s"): r.append(("s", int(soff[1:])))
        return self.emit(Ins(t, "vstore", r=r, sdata=(R(src[0], src[1], n) if n >= 3 else [])))

    def ds_write(self, addr, src, n, off=0):
        op = {1: "ds_write_b32", 2: "ds_write_b64", 4: "ds_write_b128"}[n]
        t = f"{op} v{addr}, {rs('v', src, n)}" + (f" offset:{off}" if off else "")
        return self.emit(Ins(t, "dsw", r=[("v", addr)] + R("v", src, n)))

    def ds_read(self, dst, n, addr, off=0, kind="v"):
        op = {1: "ds_read_b32", 2: "ds_read_b64", 4: "ds_read_b128"}[n]
        t = f"{op} {rs(kind, dst, n)}, v{addr}" + (f" offset:{off}" if off else "")
        return self.emit(Ins(t, "dsr", w=R(kind, dst, n), r=[("v", addr)]))

    def text(self):
        return "\n".join(self.out) + "\n"
```

```python
import sys, math, struct
from asmgen import *

NAME = "concat_heads__gqa_block_cached__mha_block_cached__near_ridge"
KV_FLAGS = sys.argv[2] if len(sys.argv) > 2 else "nt"
if KV_FLAGS == "none": KV_FLAGS = ""
OUT = sys.argv[1] if len(sys.argv) > 1 else f"cdna_kernels/{NAME}.s"

def f32bits(x):
    return struct.unpack("<I", struct.pack("<f", x))[0]

SCALE_LOG2E = f32bits(math.log2(math.e) / math.sqrt(128.0))

HEADER = open(f"cdna_kernels/{NAME}.s.ref").read().split("; Override launch geometry")[0]

def load_kernargs(g):
    g.salu("s_load_dwordx16 s[8:23], s[0:1], 0", w=R("s", 8, 16))
    g.salu("s_load_dwordx8 s[24:31], s[0:1], 64", w=R("s", 24, 8))
    g.salu("s_load_dwordx2 s[32:33], s[0:1], 96", w=R("s", 32, 2))

def make_srd(g, d, plo, soff, nrec):
    g.salu(f"s_add_u32 s{d}, s{plo}, s{soff}", w=[("s", d)], r=[("s", plo), ("s", soff)])
    g.salu(f"s_addc_u32 s{d+1}, s{plo+1}, 0", w=[("s", d+1)], r=[("s", plo+1)])
    g.salu(f"s_and_b32 s{d+1}, s{d+1}, 0xffff", w=[("s", d+1)], r=[("s", d+1)])
    g.salu(f"s_mov_b32 s{d+2}, {nrec}", w=[("s", d+2)])
    g.salu(f"s_mov_b32 s{d+3}, 0x20000", w=[("s", d+3)])

def transpose_j(g, T, raw, j, W, s_lo, s_hi):
    w = j >> 1
    sel = s_hi if (j & 1) else s_lo
    for p in range(4):
        a = raw + (2*p) * W + w
        b = raw + (2*p+1) * W + w
        g.valu(f"v_perm_b32 v{T+p}, v{b}, v{a}, s{sel}", w=[("v", T+p)], r=[("v", a), ("v", b), ("s", sel)])

def gen_attn(g):
    g.raw(".p2align 8")
    g.raw(".globl attn_kernel")
    g.raw(".type attn_kernel,@function")
    g.label("attn_kernel")
    g.reset_state()
    g.salu("s_cmp_ge_u32 s2, 256", r=[("s", 2)])
    g.salu("s_cbranch_scc1 ATTN_END")
    load_kernargs(g)
    g.valu("v_lshrrev_b32 v1, 6, v0", w=[("v", 1)], r=[("v", 0)])
    g.valu("v_and_b32 v0, 63, v0", w=[("v", 0)], r=[("v", 0)])
    g.valu("v_readfirstlane_b32 s3, v1", w=[("s", 3)], r=[("v", 1)], kind="rfl")
    S = lambda t, w, r=(): g.salu(t, w=[("s", x) for x in w], r=[("s", x) for x in r])
    S("s_and_b32 s4, s2, 7", [4], [2])
    S("s_lshr_b32 s5, s2, 3", [5], [2])
    S("s_and_b32 s6, s5, 3", [6], [5])
    S("s_lshl_b32 s7, s4, 2", [7], [4])
    S("s_add_u32 s34, s7, s6", [34], [7, 6])
    S("s_lshr_b32 s6, s5, 2", [6], [5])
    S("s_lshl_b32 s6, s6, 1", [6], [6])
    S("s_add_u32 s35, s6, s3", [35], [6, 3])
    S("s_lshl_b32 s36, s35, 22", [36], [35])
    S("s_lshl_b32 s6, s34, 17", [6], [34])
    S("s_add_u32 s36, s36, s6", [36], [36, 6])
    S("s_lshr_b32 s38, s5, 1", [38], [5])
    S("s_and_b32 s6, s5, 1", [6], [5])
    S("s_lshl_b32 s6, s6, 1", [6], [6])
    S("s_add_u32 s37, s7, s6", [37], [7, 6])
    S("s_add_u32 s37, s37, s3", [37], [37, 3])
    S("s_sub_u32 s37, s37, 2", [37], [37])
    S("s_lshl_b32 s39, s38, 20", [39], [38])
    S("s_lshl_b32 s6, s4, 17", [6], [4])
    S("s_add_u32 s39, s39, s6", [39], [39, 6])
    g.emit(Ins("s_waitcnt lgkmcnt(0)", "wait"))
    S("s_cmp_ge_u32 s3, 2", [], [3])
    S("s_cselect_b32 s34, s37, s34", [34], [37, 34])
    S("s_cselect_b32 s35, s38, s35", [35], [38, 35])
    S("s_cselect_b32 s36, s39, s36", [36], [39, 36])
    S("s_cselect_b64 s[18:19], s[8:9], s[18:19]", [18, 19], [8, 9, 18, 19])
    S("s_cselect_b64 s[20:21], s[10:11], s[20:21]", [20, 21], [10, 11, 20, 21])
    S("s_cselect_b64 s[22:23], s[12:13], s[22:23]", [22, 23], [12, 13, 22, 23])
    S("s_cselect_b64 s[24:25], s[14:15], s[24:25]", [24, 25], [14, 15, 24, 25])
    S("s_cselect_b32 s37, 0, 16", [37])
    SRD_K, SRD_V, SRD_W, SRD_X, SRD_O = 40, 44, 48, 52, 56
    make_srd(g, SRD_K, 20, 36, 131072)
    make_srd(g, SRD_V, 22, 36, 131072)
    S("s_lshl_b32 s6, s34, 8", [6], [34])
    S("s_sub_u32 s7, 0x400000, s6", [7], [6])
    make_srd(g, SRD_W, 24, 6, "s7")
    S("s_lshl_b32 s6, s35, 15", [6], [35])
    make_srd(g, SRD_X, 18, 6, 32768)
    S("s_add_u32 s6, s37, s35", [6], [37, 35])
    S("s_lshl_b32 s6, s6, 5", [6], [6])
    S("s_add_u32 s6, s6, s34", [6], [6, 34])
    S("s_lshl_b32 s6, s6, 13", [6], [6])
    make_srd(g, SRD_O, 32, 6, 8192)
    S_LO, S_HI, S_C, S_OFF = 60, 61, 62, 63
    S(f"s_mov_b32 s{S_LO}, 0x05040100", [S_LO])
    S(f"s_mov_b32 s{S_HI}, 0x07060302", [S_HI])
    S(f"s_mov_b32 s{S_C}, {SCALE_LOG2E:#x}", [S_C])

    V = lambda t, w, r=(), kind="valu": g.valu(t, w=[("v", x) for x in w], r=[("v", x) if isinstance(x, int) else x for x in r], kind=kind)
    vI, vG = 1, 2
    V("v_and_b32 v1, 15, v0", [1], [0])
    V("v_lshrrev_b32 v2, 4, v0", [2], [0])
    V("v_and_b32 v3, 3, v1", [3], [1])
    V("v_lshrrev_b32 v4, 2, v1", [4], [1])
    V("v_lshl_add_u32 v3, v3, 2, v4", [3], [3, 4])
    vK0, vK1, vV0, vV1, vX0, vX1 = 4, 5, 6, 7, 8, 9
    V("v_lshlrev_b32 v4, 8, v3", [4], [3])
    V("v_lshl_add_u32 v4, v2, 4, v4", [4], [2, 4])
    V("v_add_u32 v5, 0x1000, v4", [5], [4])
    V("v_lshlrev_b32 v6, 4, v0", [6], [0])
    V("v_add_u32 v7, 0x1000, v6", [7], [6])
    V("v_lshlrev_b32 v8, 10, v1", [8], [1])
    V("v_lshl_add_u32 v8, v2, 4, v8", [8], [2, 8])
    V("v_add_u32 v9, 0x4000, v8", [9], [8])
    TMP = 10
    QT = 32
    RING = 64
    V(f"v_lshlrev_b32 v{TMP}, 16, v2", [TMP], [2])
    V(f"v_lshl_add_u32 v{TMP}, v3, 4, v{TMP}", [TMP], [3, TMP])
    for jj in range(1, 8):
        V(f"v_add_u32 v{TMP+jj}, {jj*8192:#x}, v{TMP}", [TMP+jj], [TMP])

    slot_of = {}
    for s in range(16): slot_of[("W", s)] = ("v", RING + 32 * (s % 4))
    for t in range(4): slot_of[("K", t)] = ("a", 128 + 32 * t)
    seq = [("K", t) for t in range(4, 16)] + [("V", t) for t in range(16)]
    for n, tile in enumerate(seq): slot_of[tile] = ("v", RING + 32 * ((4 + n) % 6))
    issue_order = [("W", 0), ("W", 1), ("W", 2), ("W", 3), ("K", 0), ("K", 1), ("W", 4), ("W", 5), ("K", 2),
                   ("W", 6), ("W", 7), ("K", 3), ("W", 8), ("W", 9), ("K", 4), ("W", 10), ("W", 11), ("K", 5),
                   ("W", 12), ("W", 13), ("W", 14), ("W", 15)] + [("K", t) for t in range(6, 16)] + [("V", t) for t in range(16)]
    busy = {}
    tok = {}
    st = {"next": 0}
    def xslot(s): return 8 * (s % 4)
    def issue(tile):
        kind, t = tile
        sk, sb = slot_of[tile]
        if kind == "W":
            for qb in range(2):
                g.bload(("a", xslot(t) + 4*qb), 4, (vX0, vX1)[qb], SRD_X, "0", imm=t*64)
            S(f"s_mov_b32 s{S_OFF}, {t*32*8192:#x}", [S_OFF])
            for jj in range(8):
                last = g.bload((sk, sb + 4*jj), 4, TMP+jj, SRD_W, f"s{S_OFF}")
        elif kind == "K":
            S(f"s_mov_b32 s{S_OFF}, {t*8192:#x}", [S_OFF])
            for kb in range(2):
                for s in range(4):
                    last = g.bload((sk, sb + 16*kb + 4*s), 4, (vK0, vK1)[kb], SRD_K, f"s{S_OFF}", imm=s*64, flags=KV_FLAGS)
        else:
            S(f"s_mov_b32 s{S_OFF}, {t*8192:#x}", [S_OFF])
            for jj in range(8):
                last = g.bload((sk, sb + 4*jj), 4, (vV0, vV1)[jj >> 2], SRD_V, f"s{S_OFF}", imm=(jj & 3)*1024, flags=KV_FLAGS)
        tok[tile] = last
        busy[slot_of[tile]] = tile
    def pump():
        while st["next"] < len(issue_order):
            tile = issue_order[st["next"]]
            n = 10 if tile[0] == "W" else 8
            if slot_of[tile] in busy or g.outstanding() + n > 63: break
            issue(tile)
            st["next"] += 1
    def release(tile):
        del busy[slot_of[tile]]

    pump()
    QACC = 32
    for s in range(16):
        g.wait_vm(tok[("W", s)])
        raw = slot_of[("W", s)][1]
        for j in range(8):
            transpose_j(g, QT + 4*j, raw, j, 4, S_LO, S_HI)
            if j >= 1:
                for qb in range(2):
                    d = ("a", QACC + 8*(j-1) + 4*qb)
                    g.mfma16(d, ("v", QT + 4*(j-1)), ("a", xslot(s) + 4*qb), None if s == 0 else d)
        for qb in range(2):
            d = ("a", QACC + 8*7 + 4*qb)
            g.mfma16(d, ("v", QT + 28), ("a", xslot(s) + 4*qb), None if s == 0 else d)
        release(("W", s))
        pump()
    for qb in range(2):
        for r in range(4):
            for j in range(8):
                V(f"v_accvgpr_read_b32 v{TMP+j}, a{QACC + 8*j + 4*qb + r}", [TMP+j], [("a", QACC + 8*j + 4*qb + r)])
            for p in range(4):
                d = QT + 16*qb + 4*r + p
                V(f"v_cvt_pk_bf16_f32 v{d}, v{TMP+2*p}, v{TMP+2*p+1}", [d], [TMP+2*p, TMP+2*p+1])
    vM = [TMP + 16, TMP + 17]
    vL = [TMP + 18, TMP + 19]
    def max_tile(t):
        for qb in range(2):
            for kb in range(2):
                for r in range(4):
                    a = 16*t + 8*kb + 4*qb + r
                    V(f"v_accvgpr_read_b32 v{TMP + 8*qb + 4*kb + r}, a{a}", [TMP + 8*qb + 4*kb + r], [("a", a)])
        for qb in range(2):
            b = TMP + 8*qb
            if t == 0:
                V(f"v_max3_f32 v{vM[qb]}, v{b}, v{b+1}, v{b+2}", [vM[qb]], [b, b+1, b+2])
                V(f"v_max3_f32 v{vM[qb]}, v{vM[qb]}, v{b+3}, v{b+4}", [vM[qb]], [vM[qb], b+3, b+4])
                V(f"v_max3_f32 v{vM[qb]}, v{vM[qb]}, v{b+5}, v{b+6}", [vM[qb]], [vM[qb], b+5, b+6])
                V(f"v_max_f32 v{vM[qb]}, v{vM[qb]}, v{b+7}", [vM[qb]], [vM[qb], b+7])
            else:
                for p in range(4):
                    V(f"v_max3_f32 v{vM[qb]}, v{vM[qb]}, v{b+2*p}, v{b+2*p+1}", [vM[qb]], [vM[qb], b+2*p, b+2*p+1])
    for t in range(16):
        g.wait_vm(tok[("K", t)])
        sk, sb = slot_of[("K", t)]
        for s in range(4):
            for kb in range(2):
                for qb in range(2):
                    d = ("a", 16*t + 8*kb + 4*qb)
                    g.mfma16(d, (sk, sb + 16*kb + 4*s), ("v", QT + 16*qb + 4*s), None if s == 0 else d)
        release(("K", t))
        pump()
        if t >= 1: max_tile(t-1)
    max_tile(15)
    def xlane(reg, op):
        t0 = TMP
        V(f"v_mov_b32 v{t0}, v{reg}", [t0], [reg])
        V(f"v_permlane32_swap_b32 v{reg}, v{t0}", [reg, t0], [reg, t0], kind="perml")
        V(f"{op} v{reg}, v{reg}, v{t0}", [reg], [reg, t0])
        V(f"v_mov_b32 v{t0}, v{reg}", [t0], [reg])
        V(f"v_permlane16_swap_b32 v{reg}, v{t0}", [reg, t0], [reg, t0], kind="perml")
        V(f"{op} v{reg}, v{reg}, v{t0}", [reg], [reg, t0])
    for qb in range(2):
        xlane(vM[qb], "v_max_f32")
        V(f"v_mul_f32 v{vM[qb]}, s{S_C}, v{vM[qb]}", [vM[qb]], [vM[qb], ("s", S_C)])
        V(f"v_mov_b32 v{vL[qb]}, 0", [vL[qb]])
    def exp_tile_ops(t):
        ops = []
        for qb in range(2):
            for kb in range(2):
                for r in range(4):
                    a = 16*t + 8*kb + 4*qb + r
                    x = TMP + 8*qb + 4*kb + r
                    ops.append(lambda a=a, x=x: V(f"v_accvgpr_read_b32 v{x}, a{a}", [x], [("a", a)]))
        for qb in range(2):
            for e in range(8):
                x = TMP + 8*qb + e
                ops.append(lambda x=x, qb=qb: V(f"v_fma_f32 v{x}, v{x}, s{S_C}, -v{vM[qb]}", [x], [x, ("s", S_C), vM[qb]]))
        for qb in range(2):
            for e in range(8):
                x = TMP + 8*qb + e
                ops.append(lambda x=x: V(f"v_exp_f32 v{x}, v{x}", [x], [x], kind="trans"))
        for qb in range(2):
            for e in range(8):
                x = TMP + 8*qb + e
                ops.append(lambda x=x, qb=qb: V(f"v_add_f32 v{vL[qb]}, v{vL[qb]}, v{x}", [vL[qb]], [vL[qb], x]))
        for qb in range(2):
            for p in range(4):
                x = TMP + 8*qb + 2*p
                ops.append(lambda x=x: V(f"v_cvt_pk_bf16_f32 v{x}, v{x}, v{x+1}", [x], [x, x+1]))
        for qb in range(2):
            for p in range(4):
                x = TMP + 8*qb + 2*p
                a = 16*t + 4*qb + p
                ops.append(lambda x=x, a=a: g.valu(f"v_accvgpr_write_b32 a{a}, v{x}", w=[("a", a)], r=[("v", x)]))
        return ops
    for t in range(8):
        for op in exp_tile_ops(t): op()
    def oacc(j, qb): return ("a", 16*j + 8 + 4*qb)
    for t in range(16):
        fill = exp_tile_ops(t + 8) if t < 8 else []
        per = (len(fill) + 7) // 8
        g.wait_vm(tok[("V", t)])
        raw = slot_of[("V", t)][1]
        for j in range(9):
            if j < 8:
                transpose_j(g, QT + 4*j, raw, j, 4, S_LO, S_HI)
            if j == 7:
                release(("V", t))
                pump()
            if j >= 1:
                for qb in range(2):
                    d = oacc(j-1, qb)
                    g.mfma16(d, ("v", QT + 4*(j-1)), ("a", 16*t + 4*qb), None if t == 0 else d)
                for op in fill[(j-1)*per:j*per]: op()
    for qb in range(2):
        xlane(vL[qb], "v_add_f32")
        V(f"v_rcp_f32 v{vL[qb]}, v{vL[qb]}", [vL[qb]], [vL[qb]], kind="trans")
    for qb in range(2):
        for r in range(4):
            b = QT + 8 * ((qb*4 + r) % 4)
            for j in range(8):
                a = oacc(j, qb)[1] + r
                V(f"v_accvgpr_read_b32 v{b+j}, a{a}", [b+j], [("a", a)])
            for j in range(8):
                V(f"v_mul_f32 v{b+j}, v{b+j}, v{vL[qb]}", [b+j], [b+j, vL[qb]])
            d = RING + 4*(qb*4 + r)
            for p in range(4):
                V(f"v_cvt_pk_bf16_f32 v{d+p}, v{b+2*p}, v{b+2*p+1}", [d+p], [b+2*p, b+2*p+1])
            fo = (r*2 + qb) * 1024
            g.bstore(("v", d), 4, (vV0, vV1)[fo >> 12], SRD_O, "0", imm=fo & 4095)
    g.label("ATTN_END")
    g.raw("    s_endpgm")

def gen_oproj(g):
    g.raw(".p2align 8")
    g.raw(".globl oproj_kernel")
    g.raw(".type oproj_kernel,@function")
    g.label("oproj_kernel")
    g.reset_state()
    S = lambda t, w, r=(): g.salu(t, w=[("s", x) for x in w], r=[("s", x) for x in r])
    V = lambda t, w, r=(), kind="valu": g.valu(t, w=[("v", x) for x in w], r=[("v", x) if isinstance(x, int) else x for x in r], kind=kind)
    S("s_cmp_ge_u32 s2, 256", [], [2])
    g.salu("s_cbranch_scc1 OPROJ_END")
    load_kernargs(g)
    V("v_lshrrev_b32 v1, 6, v0", [1], [0])
    V("v_and_b32 v0, 63, v0", [0], [0])
    g.valu("v_readfirstlane_b32 s3, v1", w=[("s", 3)], r=[("v", 1)], kind="rfl")
    S("s_and_b32 s4, s2, 7", [4], [2])
    S("s_lshr_b32 s5, s2, 3", [5], [2])
    S("s_lshr_b32 s34, s4, 2", [34], [4])
    S("s_lshr_b32 s6, s4, 1", [6], [4])
    S("s_and_b32 s6, s6, 1", [6], [6])
    S("s_lshl_b32 s6, s6, 3", [6], [6])
    S("s_lshr_b32 s7, s5, 2", [7], [5])
    S("s_add_u32 s35, s6, s7", [35], [6, 7])
    S("s_and_b32 s6, s4, 1", [6], [4])
    S("s_lshl_b32 s6, s6, 2", [6], [6])
    S("s_and_b32 s7, s5, 3", [7], [5])
    S("s_add_u32 s36, s6, s7", [36], [6, 7])
    g.emit(Ins("s_waitcnt lgkmcnt(0)", "wait"))
    S("s_cmp_eq_u32 s34, 0", [], [34])
    S("s_cselect_b64 s[26:27], s[16:17], s[26:27]", [26, 27], [16, 17, 26, 27])
    SRD_W, SRD_O, SRD_Y = 40, 44, 48
    S("s_lshl_b32 s6, s3, 20", [6], [3])
    S("s_lshl_b32 s7, s36, 7", [7], [36])
    S("s_add_u32 s6, s6, s7", [6], [6, 7])
    S("s_sub_u32 s7, 0x400000, s6", [7], [6])
    make_srd(g, SRD_W, 26, 6, "s7")
    S("s_lshl_b32 s6, s34, 4", [6], [34])
    S("s_add_u32 s6, s6, s35", [6], [6, 35])
    S("s_lshl_b32 s6, s6, 5", [6], [6])
    S("s_lshl_b32 s7, s3, 3", [7], [3])
    S("s_add_u32 s6, s6, s7", [6], [6, 7])
    S("s_lshl_b32 s6, s6, 13", [6], [6])
    make_srd(g, SRD_O, 32, 6, 65536)
    S("s_lshl_b32 s6, s35, 16", [6], [35])
    S("s_lshl_b32 s7, s34, 10", [7], [34])
    S("s_add_u32 s6, s6, s7", [6], [6, 7])
    S("s_lshl_b32 s7, s36, 7", [7], [36])
    S("s_add_u32 s6, s6, s7", [6], [6, 7])
    S("s_sub_u32 s7, 0x100000, s6", [7], [6])
    make_srd(g, SRD_Y, 28, 6, "s7")
    S_LO, S_HI, S_OFF, S_OFF2 = 60, 61, 62, 63
    S(f"s_mov_b32 s{S_LO}, 0x05040100", [S_LO])
    S(f"s_mov_b32 s{S_HI}, 0x07060302", [S_HI])
    V("v_and_b32 v1, 15, v0", [1], [0])
    V("v_lshrrev_b32 v2, 4, v0", [2], [0])
    V("v_lshlrev_b32 v3, 15, v2", [3], [2])
    V("v_lshl_add_u32 v3, v1, 3, v3", [3], [1, 3])
    V("v_add_u32 v4, 0x1000, v3", [4], [3])
    V("v_lshlrev_b32 v5, 4, v0", [5], [0])
    T = 16
    RING = 32
    ACC = 0
    DEPTH = 6
    NST = 32
    tok = {}
    def issue(st):
        h, r = st >> 2, st & 3
        sb = RING + 24 * (st % DEPTH)
        S(f"s_mov_b32 s{S_OFF2}, {h*8192 + r*2048:#x}", [S_OFF2])
        for qb in range(2):
            g.bload(("v", sb + 16 + 4*qb), 4, 5, SRD_O, f"s{S_OFF2}", imm=qb*1024)
        S(f"s_mov_b32 s{S_OFF}, {(h*128 + r*8)*1024:#x}", [S_OFF])
        for jj in range(8):
            tok[st] = g.bload(("v", sb + 2*jj), 2, (3, 4)[jj >> 2], SRD_W, f"s{S_OFF}", imm=(jj & 3)*1024)
    for st in range(DEPTH): issue(st)
    for st in range(NST):
        g.wait_vm(tok[st])
        sb = RING + 24 * (st % DEPTH)
        for j in range(4):
            transpose_j(g, T + 4*j, sb, j, 2, S_LO, S_HI)
        for j in range(4):
            for qb in range(2):
                d = ("a", ACC + 8*j + 4*qb)
                g.mfma16(d, ("v", T + 4*j), ("v", sb + 16 + 4*qb), None if st == 0 else d)
        if st + DEPTH < NST: issue(st + DEPTH)
    V(f"v_mov_b32 v6, s3", [6], [("s", 3)])
    V("v_lshlrev_b32 v6, 13, v6", [6], [6])
    V("v_add_u32 v6, v6, v5", [6], [6, 5])
    for qb in range(2):
        for r in range(4):
            b = RING + 4*(qb*4 + r)
            for j in range(4):
                a = ACC + 8*j + 4*qb + r
                V(f"v_accvgpr_read_b32 v{b+j}, a{a}", [b+j], [("a", a)])
            g.ds_write(6, b, 4, off=(qb*4 + r)*1024)
    g.wait_all()
    g.salu("s_barrier")
    V(f"v_mov_b32 v6, s3", [6], [("s", 3)])
    V("v_lshlrev_b32 v6, 11, v6", [6], [6])
    V("v_add_u32 v6, v6, v5", [6], [6, 5])
    for src in range(4):
        for rr in range(2):
            g.ds_read(RING + 8*src + 4*rr, 4, 6, off=src*8192 + rr*1024)
    g.wait_all()
    for e in range(8):
        V(f"v_add_f32 v{RING+e}, v{RING+e}, v{RING+8+e}", [RING+e], [RING+e, RING+8+e])
        V(f"v_add_f32 v{RING+16+e}, v{RING+16+e}, v{RING+24+e}", [RING+16+e], [RING+16+e, RING+24+e])
    for e in range(8):
        V(f"v_add_f32 v{RING+e}, v{RING+e}, v{RING+16+e}", [RING+e], [RING+e, RING+16+e])
    for p in range(4):
        V(f"v_cvt_pk_bf16_f32 v{T+p}, v{RING+2*p}, v{RING+2*p+1}", [T+p], [RING+2*p, RING+2*p+1])
    S("s_lshr_b32 s6, s3, 1", [6], [3])
    S("s_lshl_b32 s6, s6, 15", [6], [6])
    S("s_and_b32 s7, s3, 1", [7], [3])
    S("s_lshl_b32 s7, s7, 4", [7], [7])
    S("s_add_u32 s6, s6, s7", [6], [6, 7])
    V("v_lshlrev_b32 v6, 11, v1", [6], [1])
    V("v_lshl_add_u32 v6, v2, 5, v6", [6], [2, 6])
    g.bstore(("v", T), 4, 6, SRD_Y, "s6")
    g.label("OPROJ_END")
    g.raw("    s_endpgm")

def kd(name, vgpr, accum, sgpr=72):
    return f""".p2align 6
.amdhsa_kernel {name}
  .amdhsa_next_free_vgpr {vgpr}
  .amdhsa_next_free_sgpr {sgpr}
  .amdhsa_accum_offset {accum}
  .amdhsa_group_segment_fixed_size 0
  .amdhsa_kernarg_size 104
  .amdhsa_user_sgpr_count 2
  .amdhsa_user_sgpr_kernarg_segment_ptr 1
  .amdhsa_system_sgpr_workgroup_id_x 1
.end_amdhsa_kernel
"""

g = Gen()
g.raw(HEADER.rstrip())
g.raw("; @launch kernel=attn_kernel grid=(256,1,1) block=(256,1,1) lds=0")
g.raw("; @launch kernel=oproj_kernel grid=(256,1,1) block=(256,1,1) lds=32768")
g.raw('.amdgcn_target "amdgcn-amd-amdhsa--gfx950"')
g.raw(".text")
gen_attn(g)
gen_oproj(g)
g.raw('.section .rodata,"a"')
g.raw(kd("attn_kernel", 512, 256))
g.raw(kd("oproj_kernel", 208, 176))
open(OUT, "w").write(g.text())
print("wrote", OUT, len(g.text()), "bytes")
```

```python
def R(kind, lo, n=1):
    return [(kind, lo + i) for i in range(n)]

def rs(kind, lo, n=1):
    return f"{kind}{lo}" if n == 1 else f"{kind}[{lo}:{lo+n-1}]"

class Ins:
    __slots__ = ("text", "kind", "w", "r", "c", "ws", "passes", "sdata")
    def __init__(self, text, kind, w=(), r=(), c=(), ws=1, passes=0, sdata=()):
        self.text, self.kind = text, kind
        self.w, self.r, self.c = list(w), list(r), list(c)
        self.ws, self.passes, self.sdata = ws, passes, list(sdata)

VALU_KINDS = ("valu", "trans", "perml", "rfl", "dpp")

class Gen:
    def __init__(self):
        self.out = []
        self.reset_state()

    def reset_state(self):
        self.pos = 0
        self.valu_w = {}
        self.trans_w = {}
        self.mfma_w = {}
        self.mfma_c = {}
        self.store_d = {}
        self.m0_w = -100
        self.vm_issued = 0
        self.vm_done = 0
        self.lg_issued = 0
        self.lg_done = 0
        self.now = 0
        self.mfma_free = 0
        self.tick = None
        self.in_tick = False

    def raw(self, text):
        self.out.append(text)

    def label(self, name):
        self.out.append(f"{name}:")

    def comment(self, t):
        self.out.append(f"    ; {t}")

    def _need(self, ins):
        need = 0
        def req(p, d):
            nonlocal need
            gap = self.pos - p - 1
            if d - gap > need:
                need = d - gap
        k = ins.kind
        reads = ins.r + ins.c
        MF_RD = {2: 5, 4: 8, 8: 12, 16: 20}
        MF_OV = {2: 4, 4: 6, 8: 10, 16: 18}
        MF_WAR = {2: 1, 4: 3, 8: 7, 16: 15}
        if k == "mfma":
            for x in reads:
                if x in self.valu_w: req(self.valu_w[x], 2)
            for x in ins.r:
                if x in self.mfma_w:
                    p, ps, _ = self.mfma_w[x]; req(p, MF_RD[ps])
            for x in ins.c:
                if x in self.mfma_w:
                    p, ps, dt = self.mfma_w[x]
                    if dt == tuple(ins.c) and ps == ins.passes:
                        req(p, 2 if ps == 2 else 0)
                    else:
                        req(p, MF_OV[ps])
            for x in ins.w:
                if x in self.mfma_w and x not in ins.c:
                    p, ps, dt = self.mfma_w[x]; req(p, MF_RD[ps])
        else:
            if k in VALU_KINDS or k in ("vload", "vstore", "dsr", "dsw", "ldsdma"):
                for x in reads + ins.w:
                    if x in self.mfma_w:
                        p, ps, _ = self.mfma_w[x]; req(p, MF_RD[ps])
            if k in VALU_KINDS:
                for x in ins.w:
                    if x in self.mfma_c:
                        p, ps = self.mfma_c[x]; req(p, MF_WAR[ps])
                    if x in self.store_d: req(self.store_d[x], 2)
                for x in reads:
                    if x[0] == "s" and x in self.valu_w: req(self.valu_w[x], 2)
                if k != "trans":
                    for x in reads:
                        if x in self.trans_w: req(self.trans_w[x], 1)
                if k in ("perml", "dpp"):
                    for x in reads:
                        if x in self.valu_w: req(self.valu_w[x], 2)
                if k == "rfl":
                    for x in reads:
                        if x in self.valu_w: req(self.valu_w[x], 1)
            if k in ("vload", "dsr"):
                for x in ins.w:
                    if x in self.store_d: req(self.store_d[x], 1)
            if k in ("vload", "vstore", "ldsdma"):
                for x in reads:
                    if x[0] == "s" and x in self.valu_w: req(self.valu_w[x], 5)
            if k in ("vload", "vstore", "dsr", "dsw", "ldsdma"):
                for x in reads:
                    if x in self.trans_w: req(self.trans_w[x], 1)
            if k == "ldsdma":
                req(self.m0_w, 1)
            if k == "salu":
                for x in reads:
                    if x[0] == "s" and x in self.valu_w: req(self.valu_w[x], 1)
        return need

    def emit(self, ins):
        n = self._need(ins)
        while n > 0:
            m = min(n, 16)
            self.out.append(f"    s_nop {m-1}")
            self.pos += m
            self.now += 4 * m
            n -= m
        self.out.append("    " + ins.text)
        p = self.pos
        k = ins.kind
        for x in ins.w:
            self.valu_w.pop(x, None); self.trans_w.pop(x, None); self.mfma_w.pop(x, None)
        if k in VALU_KINDS:
            for x in ins.w:
                self.valu_w[x] = p
                if k == "trans": self.trans_w[x] = p
        elif k == "mfma":
            for x in ins.w: self.mfma_w[x] = (p, ins.passes, tuple(ins.w))
            for x in ins.c: self.mfma_c[x] = (p, ins.passes)
        if ins.sdata:
            for x in ins.sdata: self.store_d[x] = p
        if k == "salu" and ("m0", 0) in ins.w:
            self.m0_w = p
        self.pos += ins.ws
        tok = None
        if k in ("vload", "vstore", "ldsdma"):
            tok = self.vm_issued
            self.vm_issued += 1
            assert self.vm_issued - self.vm_done <= 63, "too many outstanding VMEM ops"
        elif k in ("dsr", "dsw"):
            tok = self.lg_issued
            self.lg_issued += 1
        if k == "mfma":
            self.now = max(self.now, self.mfma_free) + 4
            self.mfma_free = self.now - 4 + 4 * ins.passes
        elif k == "trans": self.now += 8
        elif k == "dsw": self.now += 26 if "b128" in ins.text else 8
        elif k == "dsr": self.now += 10
        elif "s_barrier" in ins.text: self.now += 60
        elif k == "wait" and "lgkmcnt" in ins.text: self.now += 60
        else: self.now += 4
        if self.tick and not self.in_tick:
            self.in_tick = True
            self.tick()
            self.in_tick = False
        return tok

    def wait_vm(self, tok):
        if tok < self.vm_done: return
        n = self.vm_issued - 1 - tok
        self.emit(Ins(f"s_waitcnt vmcnt({n})", "wait"))
        self.vm_done = tok + 1

    def wait_lg(self, tok):
        if tok < self.lg_done: return
        n = self.lg_issued - 1 - tok
        n = min(n, 15)
        self.emit(Ins(f"s_waitcnt lgkmcnt({n})", "wait"))
        self.lg_done = self.lg_issued - n

    def wait_all(self):
        self.emit(Ins("s_waitcnt vmcnt(0) lgkmcnt(0)", "wait"))
        self.vm_done = self.vm_issued
        self.lg_done = self.lg_issued

    def outstanding(self):
        return self.vm_issued - self.vm_done

    def salu(self, text, w=(), r=()):
        return self.emit(Ins(text, "salu", w, r))

    def valu(self, text, w=(), r=(), kind="valu"):
        return self.emit(Ins(text, kind, w, r))

    def mfma16(self, d, a, b, c):
        ct = "0" if c is None else rs(c[0], c[1], 4)
        return self.emit(Ins(
            f"v_mfma_f32_16x16x32_bf16 {rs(d[0], d[1], 4)}, {rs(a[0], a[1], 4)}, {rs(b[0], b[1], 4)}, {ct}",
            "mfma", w=R(d[0], d[1], 4), r=R(a[0], a[1], 4) + R(b[0], b[1], 4),
            c=([] if c is None else R(c[0], c[1], 4)), passes=4))

    def bload(self, dst, n, voff, srd, soff, imm=0, flags=""):
        op = {1: "buffer_load_dword", 2: "buffer_load_dwordx2", 4: "buffer_load_dwordx4"}[n]
        t = f"{op} {rs(dst[0], dst[1], n)}, v{voff}, s[{srd}:{srd+3}], {soff} offen"
        if imm: t += f" offset:{imm}"
        if flags: t += " " + flags
        r = [("v", voff)] + R("s", srd, 4)
        if soff.startswith("s"): r.append(("s", int(soff[1:])))
        return self.emit(Ins(t, "vload", w=R(dst[0], dst[1], n), r=r))

    def bstore(self, src, n, voff, srd, soff, imm=0, flags=""):
        op = {1: "buffer_store_dword", 2: "buffer_store_dwordx2", 4: "buffer_store_dwordx4"}[n]
        t = f"{op} {rs(src[0], src[1], n)}, v{voff}, s[{srd}:{srd+3}], {soff} offen"
        if imm: t += f" offset:{imm}"
        if flags: t += " " + flags
        r = [("v", voff)] + R("s", srd, 4) + R(src[0], src[1], n)
        if soff.startswith("s"): r.append(("s", int(soff[1:])))
        return self.emit(Ins(t, "vstore", r=r, sdata=(R(src[0], src[1], n) if n >= 3 else [])))

    def ds_write(self, addr, src, n, off=0):
        op = {1: "ds_write_b32", 2: "ds_write_b64", 4: "ds_write_b128"}[n]
        t = f"{op} v{addr}, {rs('v', src, n)}" + (f" offset:{off}" if off else "")
        return self.emit(Ins(t, "dsw", r=[("v", addr)] + R("v", src, n)))

    def ds_read(self, dst, n, addr, off=0, kind="v"):
        op = {1: "ds_read_b32", 2: "ds_read_b64", 4: "ds_read_b128"}[n]
        t = f"{op} {rs(kind, dst, n)}, v{addr}" + (f" offset:{off}" if off else "")
        return self.emit(Ins(t, "dsr", w=R(kind, dst, n), r=[("v", addr)]))

    def text(self):
        return "\n".join(self.out) + "\n"
```

```python
import sys, math, struct
from asmgen import *

NAME = "concat_heads__gqa_block_cached__mha_block_cached__near_ridge"
def f32bits(x):
    return struct.unpack("<I", struct.pack("<f", x))[0]
SCALE_LOG2E = f32bits(math.log2(math.e) / math.sqrt(128.0))
HEADER = open(f"cdna_kernels/{NAME}.s.ref").read().split("; Override launch geometry")[0]
KSLOT = 8 * 1040

S_WV, S_XCD, S_J = 3, 4, 5
S_LO, S_HI = 38, 39
S_STAMP = 88
S_C, S_OFF, S_KB, S_T = 96, 97, 98, 100
vLIN, vKD, vKR, vWQ, vWO = 0, 1, 2, 3, 4
TMP = 10
STV = 31
T = 32
RING = 64
vM = [TMP + 16, TMP + 17]
vL = [TMP + 18, TMP + 19]

class Ctx:
    def __init__(self, g, stamps=False, stamp_base=64 << 20):
        self.g, self.stamps, self.stamp_base = g, stamps, stamp_base
        self.nstamp = 0
        self.nlabel = 0
    def S(self, t, w=(), r=()):
        return self.g.salu(t, w=[("s", x) if isinstance(x, int) else x for x in w], r=[("s", x) for x in r])
    def V(self, t, w=(), r=(), kind="valu"):
        cv = lambda x: ("v", x) if isinstance(x, int) else x
        return self.g.valu(t, w=[cv(x) for x in w], r=[cv(x) for x in r], kind=kind)
    def srd(self, d, plo, soff, nrec):
        S, g = self.S, self.g
        save, g.in_tick = g.in_tick, True
        S(f"s_add_u32 s{d}, s{plo}, s{soff}", [d], [plo, soff])
        S(f"s_addc_u32 s{d+1}, s{plo+1}, 0", [d+1], [plo+1])
        S(f"s_and_b32 s{d+1}, s{d+1}, 0xffff", [d+1], [d+1])
        S(f"s_mov_b32 s{d+2}, {nrec}", [d+2])
        S(f"s_mov_b32 s{d+3}, 0x20000", [d+3])
        g.in_tick = save
    def lgk0(self):
        self.g.emit(Ins("s_waitcnt lgkmcnt(0)", "wait")); self.g.lg_done = self.g.lg_issued
    def barrier(self):
        self.lgk0()
        self.g.salu("s_barrier")
    def stamp(self):
        if not self.stamps: return
        g = self.g
        g.salu(f"s_memrealtime s[{S_STAMP}:{S_STAMP+1}]", w=R("s", S_STAMP, 2))
        self.lgk0()
        g.valu(f"v_writelane_b32 v{STV}, s{S_STAMP}, {self.nstamp}", w=[("v", STV)], r=[("s", S_STAMP), ("v", STV)])
        g.salu(f"s_memtime s[{S_STAMP}:{S_STAMP+1}]", w=R("s", S_STAMP, 2))
        self.lgk0()
        g.valu(f"v_writelane_b32 v{STV}, s{S_STAMP}, {32 + self.nstamp}", w=[("v", STV)], r=[("s", S_STAMP), ("v", STV)])
        self.nstamp += 1
    def stamp_flush(self):
        if not self.stamps: return
        g, S, V = self.g, self.S, self.V
        g.tick = None
        g.wait_all()
        self.stamp()
        S("s_lshl_b32 s7, s2, 2", [7], [2])
        S(f"s_add_u32 s7, s7, s{S_WV}", [7], [7, S_WV])
        S("s_lshl_b32 s6, s7, 8", [6], [7])
        S(f"s_add_u32 s6, s6, {self.stamp_base:#x}", [6], [6])
        self.srd(88, 32, 6, 256)
        V(f"v_lshrrev_b32 v{TMP}, 2, v{vLIN}", [TMP], [vLIN])
        g.bstore(("v", STV), 1, TMP, 88, "0")
        g.wait_all()
    def transpose_j(self, Tb, raw, j):
        w = j >> 1
        sel = S_HI if (j & 1) else S_LO
        for p in range(4):
            a = raw + (2*p) * 4 + w
            b = raw + (2*p+1) * 4 + w
            self.V(f"v_perm_b32 v{Tb+p}, v{b}, v{a}, s{sel}", [Tb+p], [a, b, ("s", sel)])
    def tile_gemm(self, raw, pairs, first, after_perms=None, fill=()):
        g = self.g
        fill = list(fill)
        per = (len(fill) + 7) // 8
        for j in range(9):
            if j < 8:
                self.transpose_j(T + 4*j, raw, j)
            if j == 7 and after_perms: after_perms()
            if j >= 1:
                for bop, acc in pairs:
                    for qb in range(2):
                        d = acc(j-1, qb)
                        g.mfma16(d, ("v", T + 4*(j-1)), bop(qb), None if first else d)
                for op in fill[(j-1)*per:j*per]: op()
    def xlane(self, reg, op):
        V = self.V
        t0 = TMP
        V(f"v_mov_b32 v{t0}, v{reg}", [t0], [reg])
        V(f"v_permlane32_swap_b32 v{reg}, v{t0}", [reg, t0], [reg, t0], kind="perml")
        V(f"{op} v{reg}, v{reg}, v{t0}", [reg], [reg, t0])
        V(f"v_mov_b32 v{t0}, v{reg}", [t0], [reg])
        V(f"v_permlane16_swap_b32 v{reg}, v{t0}", [reg, t0], [reg, t0], kind="perml")
        V(f"{op} v{reg}, v{reg}, v{t0}", [reg], [reg, t0])
    def prologue(self, name, endlabel, lds_wave_bytes):
        g, S, V = self.g, self.S, self.V
        g.raw(".p2align 8")
        g.raw(f".globl {name}")
        g.raw(f".type {name},@function")
        g.label(name)
        g.reset_state()
        S("s_cmp_ge_u32 s2, 256", [], [2])
        g.salu(f"s_cbranch_scc1 {endlabel}")
        g.salu("s_load_dwordx16 s[8:23], s[0:1], 0", w=R("s", 8, 16))
        g.salu("s_load_dwordx8 s[24:31], s[0:1], 64", w=R("s", 24, 8))
        g.salu("s_load_dwordx2 s[32:33], s[0:1], 96", w=R("s", 32, 2))
        LN, I_, G_, X_, Y_ = TMP, TMP+1, TMP+2, TMP+3, TMP+4
        V("v_lshrrev_b32 v1, 6, v0", [1], [0])
        V(f"v_and_b32 v{LN}, 63, v0", [LN], [0])
        V(f"v_readfirstlane_b32 s{S_WV}, v1", [("s", S_WV)], [1], kind="rfl")
        S(f"s_and_b32 s{S_XCD}, s2, 7", [S_XCD], [2])
        S(f"s_lshr_b32 s{S_J}, s2, 3", [S_J], [2])
        S(f"s_mul_i32 s{S_KB}, s{S_WV}, {lds_wave_bytes}", [S_KB], [S_WV])
        S(f"s_mov_b32 s{S_LO}, 0x05040100", [S_LO])
        S(f"s_mov_b32 s{S_HI}, 0x07060302", [S_HI])
        S(f"s_mov_b32 s{S_C}, {SCALE_LOG2E:#x}", [S_C])
        V(f"v_and_b32 v{I_}, 15, v{LN}", [I_], [LN])
        V(f"v_lshrrev_b32 v{G_}, 4, v{LN}", [G_], [LN])
        V(f"v_lshlrev_b32 v{vLIN}, 4, v{LN}", [vLIN], [LN])
        V(f"v_lshlrev_b32 v{X_}, 2, v{G_}", [X_], [G_])
        V(f"v_xor_b32 v{X_}, v{X_}, v{I_}", [X_], [X_, I_])
        V(f"v_lshlrev_b32 v{X_}, 4, v{X_}", [X_], [X_])
        V(f"v_lshl_add_u32 v{vKD}, v{G_}, 10, v{X_}", [vKD], [G_, X_])
        V(f"v_lshrrev_b32 v{X_}, 2, v{I_}", [X_], [I_])
        V(f"v_mul_u32_u24 v{X_}, 1040, v{X_}", [X_], [X_])
        V(f"v_and_b32 v{Y_}, 3, v{I_}", [Y_], [I_])
        V(f"v_lshl_add_u32 v{X_}, v{Y_}, 8, v{X_}", [X_], [Y_, X_])
        V(f"v_xor_b32 v{Y_}, v{Y_}, v{G_}", [Y_], [Y_, G_])
        V(f"v_lshl_add_u32 v{X_}, v{Y_}, 6, v{X_}", [X_], [Y_, X_])
        V(f"v_add_u32 v{vKR}, s{S_KB}, v{X_}", [vKR], [("s", S_KB), X_])
        V(f"v_lshlrev_b32 v{X_}, 4, v{I_}", [X_], [I_])
        V(f"v_lshl_add_u32 v{vWQ}, v{G_}, 18, v{X_}", [vWQ], [G_, X_])
        V(f"v_lshl_add_u32 v{vWO}, v{G_}, 15, v{X_}", [vWO], [G_, X_])
        if self.stamps: V(f"v_mov_b32 v{STV}, 0", [STV])
        self.lgk0()
        self.stamp()

class Fifo:
    def __init__(self, g, slots):
        self.g, self.slots = g, slots
        self.order, self.next, self.sub, self.busy, self.tok, self.slot = [], 0, 0, {}, {}, {}
    def add(self, name, fn):
        slot = self.slots[len(self.order) % len(self.slots)]
        self.order.append((name, slot, fn(slot))); self.slot[name] = slot
    def can(self):
        if self.next >= len(self.order): return False
        name, slot, th = self.order[self.next]
        if self.sub == 0 and slot in self.busy: return False
        return self.g.outstanding() < 62
    def issue1(self):
        name, slot, th = self.order[self.next]
        if self.sub == 0: self.busy[slot] = name
        save, self.g.in_tick = self.g.in_tick, True
        t = th[self.sub]()
        self.g.in_tick = save
        self.sub += 1
        if self.sub == len(th):
            self.tok[name] = t; self.next += 1; self.sub = 0
    def wait(self, name):
        assert name in self.tok, name
        self.g.wait_vm(self.tok[name])
    def release(self, name):
        del self.busy[self.slot[name]]

class WinPacer:
    def __init__(self, g, seq, win, pace):
        self.g, self.seq, self.i, self.win, self.pace, self.last = g, seq, 0, win, pace, -1000
    def cur(self):
        while self.i < len(self.seq) and self.seq[self.i][1] in self.seq[self.i][0].tok: self.i += 1
        return self.seq[self.i][0] if self.i < len(self.seq) else None
    def step(self):
        g, f = self.g, self.cur()
        if f is None: return False
        name, slot, th = f.order[f.next]
        if f.sub == 0 and slot in f.busy: return False
        save, g.in_tick = g.in_tick, True
        if g.outstanding() >= self.win: g.wait_vm(g.vm_issued - self.win)
        g.in_tick = save
        f.issue1()
        self.last = g.now
        return True
    def fill(self, n=10**9):
        while n > 0 and self.step(): n -= 1
    def need(self, f, name):
        while name not in f.tok:
            assert self.step(), f"{name} cannot be issued"
    def __call__(self):
        if self.g.now - self.last >= self.pace: self.step()

class Loads:
    def __init__(self, c):
        self.c = c
    def dma(self, slot, idx, srd, off, imm, flags=""):
        c, g = self.c, self.c.g
        m0 = slot*KSLOT + idx*1040 - imm
        assert m0 >= 0
        c.S(f"s_add_u32 m0, s{S_KB}, {m0:#x}", [("m0", 0)], [S_KB])
        c.S(f"s_mov_b32 s{S_OFF}, {off:#x}", [S_OFF])
        t = f"buffer_load_dwordx4 v{vKD}, s[{srd}:{srd+3}], s{S_OFF} offen"
        if imm: t += f" offset:{imm}"
        if flags: t += " " + flags
        t += " lds"
        return g.emit(Ins(t, "ldsdma", r=[("v", vKD), ("s", S_OFF)] + R("s", srd, 4)))
    def ld(self, dst, voff, srd, off, flags="", kind="v"):
        imm = off & 0xfff if (off & 0xfff) and False else 0
        self.c.S(f"s_mov_b32 s{S_OFF}, {off:#x}", [S_OFF])
        return self.c.g.bload((kind, dst), 4, voff, srd, f"s{S_OFF}", flags=flags)
    def k(self, srd, off, flags=""):
        return lambda slot: [(lambda kb=kb, jj=jj: self.dma(slot, 4*kb + jj, srd, off + kb*4096, jj*256, flags)) for kb in range(2) for jj in range(4)]
    def x(self, srd, off):
        return lambda slot: [(lambda idx=idx: self.dma(slot, idx, srd, off + idx*4096, 0)) for idx in range(8)]
    def v(self, srd, off, flags="", kind="v"):
        return lambda slot: [(lambda jj=jj: self.ld(slot + 4*jj, vLIN, srd, off + jj*1024, flags, kind)) for jj in range(8)]
    def w(self, srd, row0, coloff=0):
        return lambda slot: [(lambda jj=jj: self.ld(slot + 4*jj, vWQ, srd, (row0 + jj)*8192 + coloff)) for jj in range(8)]
    def wo(self, srd, row0, coloff=0):
        return lambda slot: [(lambda jj=jj: self.ld(slot + 4*jj, vWO, srd, (row0 + jj)*1024 + coloff)) for jj in range(8)]

def attn_helpers(c):
    V, g = c.V, c.g
    def read_ktile(slot, kind, dst):
        for kb in range(2):
            for s in range(4):
                last = g.ds_read(dst + 16*kb + 4*s, 4, vKR, off=slot*KSLOT + kb*4160 + s*16, kind=kind)
        return last
    def s_mfmas(t, kfr, qfr):
        for s in range(4):
            for kb in range(2):
                for qb in range(2):
                    d = ("a", 16*t + 8*kb + 4*qb)
                    g.mfma16(d, (kfr[0], kfr[1] + 16*kb + 4*s), (qfr[0], qfr[1] + 8*s + 4*qb), None if s == 0 else d)
    def max_tile(t):
        for qb in range(2):
            for kb in range(2):
                for r in range(4):
                    a, x = 16*t + 8*kb + 4*qb + r, TMP + 8*qb + 4*kb + r
                    V(f"v_accvgpr_read_b32 v{x}, a{a}", [x], [("a", a)])
        for qb in range(2):
            b, m = TMP + 8*qb, vM[qb]
            if t == 0:
                V(f"v_max3_f32 v{m}, v{b}, v{b+1}, v{b+2}", [m], [b, b+1, b+2])
                V(f"v_max3_f32 v{m}, v{m}, v{b+3}, v{b+4}", [m], [m, b+3, b+4])
                V(f"v_max3_f32 v{m}, v{m}, v{b+5}, v{b+6}", [m], [m, b+5, b+6])
                V(f"v_max_f32 v{m}, v{m}, v{b+7}", [m], [m, b+7])
            else:
                for p in range(4):
                    V(f"v_max3_f32 v{m}, v{m}, v{b+2*p}, v{b+2*p+1}", [m], [m, b+2*p, b+2*p+1])
    def finish_max():
        for qb in range(2):
            c.xlane(vM[qb], "v_max_f32")
            V(f"v_mul_f32 v{vM[qb]}, s{S_C}, v{vM[qb]}", [vM[qb]], [vM[qb], ("s", S_C)])
            V(f"v_mov_b32 v{vL[qb]}, 0", [vL[qb]])
    def exp_ops(t):
        ops = []
        for qb in range(2):
            for kb in range(2):
                for r in range(4):
                    a, x = 16*t + 8*kb + 4*qb + r, TMP + 8*qb + 4*kb + r
                    ops.append(lambda a=a, x=x: V(f"v_accvgpr_read_b32 v{x}, a{a}", [x], [("a", a)]))
        for e in range(16):
            ops.append(lambda x=TMP + e, m=vM[e >> 3]: V(f"v_fma_f32 v{x}, v{x}, s{S_C}, -v{m}", [x], [x, ("s", S_C), m]))
        for e in range(16):
            ops.append(lambda x=TMP + e: V(f"v_exp_f32 v{x}, v{x}", [x], [x], kind="trans"))
        for e in range(16):
            ops.append(lambda x=TMP + e, l=vL[e >> 3]: V(f"v_add_f32 v{l}, v{l}, v{x}", [l], [l, x]))
        for p in range(8):
            ops.append(lambda x=TMP + 2*p: V(f"v_cvt_pk_bf16_f32 v{x}, v{x}, v{x+1}", [x], [x, x+1]))
        for p in range(8):
            ops.append(lambda x=TMP + 2*p, a=16*t + p: V(f"v_accvgpr_write_b32 a{a}, v{x}", [("a", a)], [x]))
        return ops
    return read_ktile, s_mfmas, max_tile, finish_max, exp_ops

def kd(name, vgpr, accum, sgpr=102):
    return f""".p2align 6
.amdhsa_kernel {name}
  .amdhsa_next_free_vgpr {vgpr}
  .amdhsa_next_free_sgpr {sgpr}
  .amdhsa_accum_offset {accum}
  .amdhsa_group_segment_fixed_size 0
  .amdhsa_kernarg_size 104
  .amdhsa_user_sgpr_count 2
  .amdhsa_user_sgpr_kernarg_segment_ptr 1
  .amdhsa_system_sgpr_workgroup_id_x 1
.end_amdhsa_kernel
"""
```

```python
from common import *
OUT = sys.argv[1] if len(sys.argv) > 1 else f"cdna_kernels/{NAME}.s"
OPTS = dict(a.split("=") for a in sys.argv[2:])
FL = {k: OPTS.get(k, OPTS.get("kv", "")).replace("+", " ") for k in ("ak", "av", "bk", "bv")}
STAMPS = OPTS.get("stamps", "0") == "1"
WIN_A = int(OPTS.get("wina", "40"))
WIN_B = int(OPTS.get("winb", "20"))
WIN_B2 = int(OPTS.get("winb2", "32"))
PACE = int(OPTS.get("pace", "24"))
QPACE = int(OPTS.get("qpace", "110"))
SPIN_MAX = int(OPTS.get("spin", "20000"))
NKS = 4
WB = NKS * KSLOT
WS_Q, WS_O, WS_P, WS_F = 0, 8 << 20, 16 << 20, 40 << 20
F_O, F_PA, F_PB, F_Q = 0, 4096, 8192, 12288
L_FLAG = 4 * WB
L_END = L_FLAG + 256
LF_X, LF_KB = 0, 8
KN = f"{NAME}_kernel"

S_SUB, S_B, S_H, S_AB16 = 34, 35, 36, 37
SRD_W, SRD_X, SRD_Y, SRD_K, SRD_V, SRD_Q, SRD_O, SRD_F, SRD_D, SRD_Z = 40, 44, 48, 52, 56, 60, 64, 68, 72, 76
S_FO, S_FPA, S_FPB, S_MT2, S_NT, S_U, S_FQ = 80, 81, 82, 83, 84, 85, 99
vFW, vL1, vL2, vZ, vSUB4 = 5, 6, 7, 8, 9
SC = "sc1"

g = Gen()
c = Ctx(g, stamps=STAMPS)
S, V = c.S, c.V
L = Loads(c)
read_ktile, s_mfmas, max_tile, finish_max, exp_ops = attn_helpers(c)

def sync_state():
    g.vm_done = g.vm_issued; g.lg_done = g.lg_issued

def poll_global(srd, voff, soff, expect, width="dword", lanes=64):
    c.nlabel += 1
    lab = f"PG{c.nlabel}"
    save, g.tick = g.tick, None
    S(f"s_mov_b32 s{S_T}, {expect:#x}", [S_T])
    S(f"s_mov_b32 s101, {SPIN_MAX}", [101])
    if lanes < 64: S(f"s_mov_b64 exec, {(1 << lanes) - 1:#x}")
    g.raw("    s_nop 4")
    g.label(lab)
    g.raw(f"    buffer_load_{width} v{TMP}, v{voff}, s[{srd}:{srd+3}], {soff} offen sc1")
    g.raw("    s_waitcnt vmcnt(0)")
    g.raw(f"    v_cmp_ne_u32 vcc, s{S_T}, v{TMP}")
    g.raw("    s_nop 4")
    g.raw("    s_cmp_eq_u64 vcc, 0")
    g.raw(f"    s_cbranch_scc1 {lab}_done")
    g.raw("    s_sleep 2")
    g.raw("    s_sub_u32 s101, s101, 1")
    g.raw(f"    s_cbranch_scc0 {lab}")
    g.label(lab + "_done")
    if lanes < 64: g.raw("    s_mov_b64 exec, -1")
    g.vm_done = g.vm_issued
    g.pos += 16; g.now += 1000
    g.tick = save

def lds_set(off):
    c.lgk0()
    V(f"v_mov_b32 v{TMP}, 1", [TMP])
    g.emit(Ins(f"ds_write_b32 v{vSUB4}, v{TMP} offset:{off}", "dsw", r=[("v", vSUB4), ("v", TMP)]))
    c.lgk0()

def lds_wait(off):
    c.nlabel += 1
    lab = f"LW{c.nlabel}"
    save, g.tick = g.tick, None
    V(f"v_mov_b32 v{TMP+2}, {L_FLAG:#x}", [TMP+2])
    S(f"s_mov_b32 s101, {SPIN_MAX*8}", [101])
    g.raw("    s_nop 1")
    g.label(lab)
    g.raw(f"    ds_read_b64 v[{TMP}:{TMP+1}], v{TMP+2} offset:{off}")
    g.raw("    s_waitcnt lgkmcnt(0)")
    g.raw(f"    v_and_b32 v{TMP}, v{TMP}, v{TMP+1}")
    g.raw("    s_nop 1")
    g.raw(f"    v_readfirstlane_b32 s{S_T}, v{TMP}")
    g.raw("    s_nop 3")
    g.raw(f"    s_cmp_eq_u32 s{S_T}, 1")
    g.raw(f"    s_cbranch_scc1 {lab}_done")
    g.raw("    s_sleep 1")
    g.raw("    s_sub_u32 s101, s101, 1")
    g.raw(f"    s_cbranch_scc0 {lab}")
    g.label(lab + "_done")
    g.lg_done = g.lg_issued
    g.pos += 12; g.now += 150
    g.tick = save

def flag_store(soff_reg, val_reg):
    save, g.in_tick = g.in_tick, True
    S("s_mov_b64 exec, 1")
    t = g.bstore(("v", val_reg), 1, vZ, SRD_F, f"s{soff_reg}", flags=SC)
    S("s_mov_b64 exec, -1")
    g.in_tick = save
    return t

def publish(soff_reg):
    g.wait_vm(g.vm_issued - 1)
    V(f"v_mov_b32 v{TMP}, 1", [TMP])
    flag_store(soff_reg, TMP)

def lds_addr(off):
    return (vLIN, vL1, vL2)[off >> 16], off & 0xffff

g.raw(HEADER.rstrip())
g.raw(f"; @launch grid=(256,1,1) block=(256,1,1) lds={L_END}")
g.raw('.amdgcn_target "amdgcn-amd-amdhsa--gfx950"')
g.raw(".text")
c.prologue(KN, "K_END", WB)
S(f"s_and_b32 s{S_SUB}, s{S_WV}, 1", [S_SUB], [S_WV])
V(f"v_add_u32 v{vFW}, s{S_KB}, v{vLIN}", [vFW], [("s", S_KB), vLIN])
V(f"v_add_u32 v{vL1}, 0x10000, v{vLIN}", [vL1], [vLIN])
V(f"v_add_u32 v{vL2}, 0x20000, v{vLIN}", [vL2], [vLIN])
V(f"v_mov_b32 v{vZ}, 0", [vZ])
S(f"s_lshl_b32 s6, s{S_SUB}, 2", [6], [S_SUB])
S(f"s_add_u32 s6, s6, {L_FLAG:#x}", [6], [6])
V(f"v_mov_b32 v{vSUB4}, s6", [vSUB4], [("s", 6)])
S(f"s_lshr_b32 s86, s{S_J}, 4", [86], [S_J])
S(f"s_lshr_b32 s6, s{S_J}, 2", [6], [S_J])
S("s_and_b32 s6, s6, 3", [6], [6])
S("s_lshl_b32 s6, s6, 2", [6], [6])
S(f"s_add_u32 s87, s6, s{S_WV}", [87], [6, S_WV])
S(f"s_and_b32 s6, s{S_J}, 3", [6], [S_J])
S(f"s_lshl_b32 s7, s{S_XCD}, 2", [7], [S_XCD])
S(f"s_add_u32 s{S_U}, s6, s7", [S_U], [6, 7])
S("s_cmp_eq_u32 s86, 0", [], [86])
S("s_cselect_b64 s[92:93], s[8:9], s[18:19]", [92, 93], [8, 9, 18, 19])
S("s_cselect_b64 s[94:95], s[14:15], s[24:25]", [94, 95], [14, 15, 24, 25])
S("s_lshl_b32 s6, s87, 15", [6], [87])
c.srd(SRD_X, 92, 6, 32768)
S(f"s_lshl_b32 s6, s{S_WV}, 20", [6], [S_WV])
S(f"s_lshl_b32 s7, s{S_U}, 8", [7], [S_U])
S("s_add_u32 s6, s6, s7", [6], [6, 7])
S("s_sub_u32 s7, 0x400000, s6", [7], [6])
c.srd(SRD_W, 94, 6, "s7")
wf = Fifo(g, [RING + 32*i for i in range(4)])
bf = Fifo(g, list(range(4)))
for s in range(4):
    wf.add(s, L.w(SRD_W, 8*s))
    bf.add(s, L.x(SRD_X, s*256))
for _ in range(16): bf.issue1()
S("s_lshl_b32 s6, s86, 4", [6], [86])
S("s_add_u32 s6, s6, s87", [6], [6, 87])
S("s_lshl_b32 s6, s6, 5", [6], [6])
S(f"s_add_u32 s6, s6, s{S_U}", [6], [6, S_U])
S(f"s_lshl_b32 s{S_FQ}, s6, 2", [S_FQ], [6])
S(f"s_add_u32 s{S_FQ}, s{S_FQ}, {F_Q}", [S_FQ], [S_FQ])
S("s_lshl_b32 s6, s6, 13", [6], [6])
c.srd(SRD_Y, 32, 6, 8192)
S(f"s_lshr_b32 s{S_B}, s{S_J}, 1", [S_B], [S_J])
S(f"s_and_b32 s6, s{S_J}, 1", [6], [S_J])
S("s_lshl_b32 s6, s6, 1", [6], [6])
S(f"s_add_u32 s6, s6, s{S_SUB}", [6], [6, S_SUB])
S(f"s_lshl_b32 s7, s{S_XCD}, 2", [7], [S_XCD])
S(f"s_add_u32 s{S_H}, s6, s7", [S_H], [6, 7])
S(f"s_lshl_b32 s90, s{S_B}, 22", [90], [S_B])
S(f"s_lshl_b32 s7, s{S_H}, 17", [7], [S_H])
S("s_add_u32 s90, s90, s7", [90], [90, 7])
S(f"s_lshl_b32 s91, s{S_B}, 20", [91], [S_B])
S(f"s_lshl_b32 s7, s{S_XCD}, 17", [7], [S_XCD])
S("s_add_u32 s91, s91, s7", [91], [91, 7])
S(f"s_cmp_ge_u32 s{S_WV}, 2", [], [S_WV])
S("s_cselect_b32 s90, s91, s90", [90], [90, 91])
S("s_cselect_b64 s[20:21], s[10:11], s[20:21]", [20, 21], [10, 11, 20, 21])
S("s_cselect_b64 s[22:23], s[12:13], s[22:23]", [22, 23], [12, 13, 22, 23])
S(f"s_cselect_b32 s{S_AB16}, 0, 16", [S_AB16])
S(f"s_lshr_b32 s7, s{S_AB16}, 1", [7], [S_AB16])
S(f"s_add_u32 s7, s7, s{S_XCD}", [7], [7, S_XCD])
S("s_lshl_b32 s7, s7, 4", [7], [7])
S(f"s_add_u32 s7, s7, s{S_B}", [7], [7, S_B])
S("s_lshl_b32 s7, s7, 2", [7], [7])
S("s_add_u32 s7, s7, s6", [7], [7, 6])
S(f"s_lshl_b32 s{S_FO}, s7, 2", [S_FO], [7])
c.srd(SRD_K, 20, 90, 131072)
c.srd(SRD_V, 22, 90, 131072)
for _ in range(16): bf.issue1()
S(f"s_add_u32 s6, s{S_AB16}, s{S_B}", [6], [S_AB16, S_B])
S("s_lshl_b32 s6, s6, 5", [6], [6])
S(f"s_add_u32 s6, s6, s{S_H}", [6], [6, S_H])
S("s_lshl_b32 s6, s6, 13", [6], [6])
c.srd(SRD_Q, 32, 6, 8192)
S(f"s_add_u32 s6, s6, {WS_O:#x}", [6], [6])
c.srd(SRD_O, 32, 6, 8192)
S(f"s_mov_b32 s6, {WS_F:#x}", [6])
c.srd(SRD_F, 32, 6, 16384)
S("s_mov_b32 s6, 0", [6])
c.srd(SRD_D, 30, 6, 256)
S(f"s_lshr_b32 s{S_MT2}, s{S_J}, 2", [S_MT2], [S_J])
S(f"s_and_b32 s{S_NT}, s{S_J}, 3", [S_NT], [S_J])
S(f"s_lshl_b32 s6, s{S_MT2}, 1", [6], [S_MT2])
S(f"s_add_u32 s6, s6, s{S_SUB}", [6], [6, S_SUB])
S("s_lshl_b32 s6, s6, 2", [6], [6])
S(f"s_add_u32 s6, s6, s{S_NT}", [6], [6, S_NT])
S("s_lshl_b32 s6, s6, 3", [6], [6])
S(f"s_add_u32 s6, s6, s{S_XCD}", [6], [6, S_XCD])
S("s_lshl_b32 s6, s6, 2", [6], [6])
S(f"s_add_u32 s{S_FPA}, s6, {F_PA}", [S_FPA], [6])
S(f"s_lshl_b32 s6, s{S_MT2}, 1", [6], [S_MT2])
S(f"s_lshr_b32 s7, s{S_WV}, 1", [7], [S_WV])
S("s_add_u32 s6, s6, s7", [6], [6, 7])
S("s_lshl_b32 s6, s6, 2", [6], [6])
S(f"s_add_u32 s6, s6, s{S_NT}", [6], [6, S_NT])
S("s_lshl_b32 s6, s6, 1", [6], [6])
S(f"s_add_u32 s6, s6, s{S_SUB}", [6], [6, S_SUB])
S("s_lshl_b32 s6, s6, 3", [6], [6])
S(f"s_add_u32 s6, s6, s{S_XCD}", [6], [6, S_XCD])
S("s_lshl_b32 s6, s6, 2", [6], [6])
S(f"s_add_u32 s{S_FPB}, s6, {F_PB}", [S_FPB], [6])
for r in (S_FO, S_FPA, S_FPB, S_FQ): flag_store(r, vZ)
V(f"v_lshrrev_b32 v{TMP}, 2, v{vLIN}", [TMP], [vLIN])
V(f"v_add_u32 v{TMP}, {L_FLAG:#x}, v{TMP}", [TMP], [TMP])
g.ds_write(TMP, vZ, 1)
for _ in range(16): wf.issue1()
for xq in range(4):
    bf.wait(xq)
    last = read_ktile(xq, "a", 32*xq)
    for _ in range(4): wf.issue1()
g.wait_lg(last)
c.stamp()
bop = lambda kq, s: (lambda qb: ("a", 32*kq + 16*qb + 4*s))
acc = lambda j, qb: ("a", 128 + 8*j + 4*qb)
FB = 192
kf = Fifo(g, list(range(NKS)))
rf = Fifo(g, [RING + 32*i for i in range(5)])
for i in range(5): rf.busy[RING + 32*i] = "gemm"
for i in range(NKS): kf.busy[i] = "gemm"
class KV:
    pass
for t in range(16):
    kf.add(t, L.k(SRD_K, t*8192, FL["bk"]))
    rf.add(t, L.v(SRD_V, t*8192, FL["bv"]))
def stage(s):
    wf.wait(s)
    raw = wf.slot[s]
    for j in range(8):
        c.transpose_j(T + 4*j, raw, j)
        g.ds_write(vFW, T + 4*j, 4, off=(s*8 + j)*1024)
    del rf.busy[raw]
def frag_reads(s, kq, buf):
    toks = []
    for j in range(8):
        a, o = lds_addr(kq*WB + (s*8 + j)*1024)
        toks.append(g.ds_read(FB + 32*buf + 4*j, 4, a, off=o))
    return toks
pre = WinPacer(g, [(rf, t) for t in range(4)], 62, QPACE)
stage(0)
first = True
for s in range(4):
    c.barrier()
    toks = frag_reads(s, 0, 0)
    if s == 0:
        V(f"v_mov_b32 v{TMP}, 1", [TMP])
        S(f"s_cmp_eq_u32 s{S_WV}, 0", [], [S_WV])
        S("s_cselect_b64 exec, 1, 0")
        g.salu("s_cbranch_scc0 NOCERT")
        g.raw(f"    buffer_store_byte v{TMP}, v{vZ}, s[{SRD_D}:{SRD_D+3}], s2 offen sc1")
        g.label("NOCERT")
        S("s_mov_b64 exec, -1")
    if s < 3: stage(s + 1)
    if s == 1: g.tick = pre
    for kq in range(4):
        nxt = frag_reads(s, kq + 1, (kq + 1) & 1) if kq < 3 else None
        for j in range(8):
            g.wait_lg(toks[j])
            for qb in range(2):
                d = acc(j, qb)
                g.mfma16(d, ("v", FB + 32*(kq & 1) + 4*j), bop(kq, s)(qb), None if first else d)
        first = False
        toks = nxt
g.tick = None
c.stamp()
k = 0
for qb in range(2):
    for r in range(4):
        b = (T + 8*(k % 4)); k += 1
        for j in range(8):
            a = acc(j, qb)[1] + r
            V(f"v_accvgpr_read_b32 v{b+j}, a{a}", [b+j], [("a", a)])
        for p in range(4):
            V(f"v_cvt_pk_bf16_f32 v{b+p}, v{b+2*p}, v{b+2*p+1}", [b+p], [b+2*p, b+2*p+1])
        S(f"s_mov_b32 s7, {(r*2 + qb)*1024:#x}", [7])
        qtok = g.bstore(("v", b), 4, vLIN, SRD_Y, "s7", flags=SC)
del rf.busy[RING + 128]
c.barrier()
for i in range(NKS): del kf.busy[i]
for _ in range(8): kf.issue1()
g.wait_vm(qtok)
V(f"v_mov_b32 v{TMP}, 1", [TMP])
flag_store(S_FQ, TMP)
c.stamp()
for _ in range(8): kf.issue1()
V(f"v_lshrrev_b32 v{TMP+1}, 2, v{vLIN}", [TMP+1], [vLIN])
poll_global(SRD_D, TMP+1, "0", 0x01010101)
for _ in range(8): kf.issue1()
S(f"s_add_u32 s6, s{S_AB16}, s{S_B}", [6], [S_AB16, S_B])
S("s_lshl_b32 s6, s6, 5", [6], [6])
S(f"s_add_u32 s6, s6, s{S_H}", [6], [6, S_H])
S("s_lshl_b32 s6, s6, 2", [6], [6])
S(f"s_add_u32 s{S_U}, s6, {F_Q}", [S_U], [6])
poll_global(SRD_F, vZ, f"s{S_U}", 1, lanes=1)
c.stamp()
for f in range(8):
    qtok = L.ld(T + 4*f, vLIN, SRD_Q, f*1024, flags=SC)
S(f"s_cmp_ge_u32 s{S_WV}, 2", [], [S_WV])
g.salu("s_cbranch_scc1 A_PATH")

import copy
def snapshot():
    keys = ("pos", "valu_w", "trans_w", "mfma_w", "mfma_c", "store_d", "m0_w", "vm_issued", "vm_done", "lg_issued", "lg_done", "now", "mfma_free")
    return ({k: copy.copy(getattr(g, k)) for k in keys},
            [(f, f.next, f.sub, dict(f.busy), dict(f.tok)) for f in (kf, rf)], c.nstamp)
def restore(s):
    for k, v in s[0].items(): setattr(g, k, copy.copy(v))
    for f, n, sb, b, t in s[1]: f.next, f.sub, f.busy, f.tok = n, sb, dict(b), dict(t)
    c.nstamp = s[2]
snap = snapshot()

def attention(win_k, win_v, kfl, vfl, is_b):
    KF = RING + 5*32
    for f, mk, fl, srd in ((kf, L.k, kfl, SRD_K), (rf, L.v, vfl, SRD_V)):
        for i, (name, slot, th) in enumerate(f.order):
            f.order[i] = (name, slot, mk(srd, name*8192, fl)(slot))
    seq = [(kf, t) for t in range(16)] + [(rf, t) for t in range(16)]
    if rf.sub: seq = [(rf, rf.next)] + seq
    wp = WinPacer(g, seq, win_k, PACE)
    g.tick = wp
    g.wait_vm(qtok)
    for t in range(16):
        wp.need(kf, t)
        kf.wait(t)
        last = read_ktile(kf.slot[t], "v", KF)
        if t >= 1: max_tile(t-1)
        g.wait_lg(last)
        kf.release(t)
        s_mfmas(t, ("v", KF), ("v", T))
    if is_b: lds_set(LF_KB)
    wp.win = win_v
    max_tile(15)
    finish_max()
    c.stamp()
    for t in range(8):
        for op in exp_ops(t): op()
    oacc = lambda j, qb: ("a", 16*j + 8 + 4*qb)
    for t in range(16):
        wp.need(rf, t)
        rf.wait(t)
        c.tile_gemm(rf.slot[t], [(lambda qb, t=t: ("a", 16*t + 4*qb), oacc)], t == 0,
                    after_perms=lambda t=t: rf.release(t), fill=exp_ops(t+8) if t < 8 else ())
    c.stamp()
    g.tick = None
    for qb in range(2):
        c.xlane(vL[qb], "v_add_f32")
        V(f"v_rcp_f32 v{vL[qb]}, v{vL[qb]}", [vL[qb]], [vL[qb]], kind="trans")
    k = 0
    for qb in range(2):
        for r in range(4):
            b = RING + 8*k; k += 1
            for j in range(8):
                a = oacc(j, qb)[1] + r
                V(f"v_accvgpr_read_b32 v{b+j}, a{a}", [b+j], [("a", a)])
            for j in range(8):
                V(f"v_mul_f32 v{b+j}, v{b+j}, v{vL[qb]}", [b+j], [b+j, vL[qb]])
            for p in range(4):
                V(f"v_cvt_pk_bf16_f32 v{b+p}, v{b+2*p}, v{b+2*p+1}", [b+p], [b+2*p, b+2*p+1])
            S(f"s_mov_b32 s7, {(r*2 + qb)*1024:#x}", [7])
            g.bstore(("v", b), 4, vLIN, SRD_O, "s7", flags=SC)
    publish(S_FO)
    c.stamp()

def check_all_q():
    V(f"v_lshrrev_b32 v{TMP+1}, 2, v{vLIN}", [TMP+1], [vLIN])
    poll_global(SRD_D, TMP+1, "0", 0x01010101)

def out_srd(ab, s_b, s_grp, extra=None):
    S(f"s_lshl_b32 s6, s{s_b}, 16", [6], [s_b])
    if ab: S("s_add_u32 s6, s6, 1024", [6], [6])
    S(f"s_lshr_b32 s7, s{s_grp}, 3", [7], [s_grp])
    S("s_lshl_b32 s7, s7, 8", [7], [7])
    S("s_add_u32 s6, s6, s7", [6], [6, 7])
    S(f"s_lshr_b32 s7, s{s_grp}, 2", [7], [s_grp])
    S("s_and_b32 s7, s7, 1", [7], [7])
    S("s_lshl_b32 s7, s7, 15", [7], [7])
    S("s_add_u32 s6, s6, s7", [6], [6, 7])
    S(f"s_and_b32 s7, s{s_grp}, 3", [7], [s_grp])
    S("s_lshl_b32 s7, s7, 4", [7], [7])
    S("s_add_u32 s6, s6, s7", [6], [6, 7])
    if extra is not None: S(f"s_add_u32 s6, s6, s{extra}", [6], [6, extra])
    S("s_sub_u32 s7, 0x100000, s6", [7], [6])
    c.srd(SRD_Z, 28, 6, "s7")
    V(f"v_lshrrev_b32 v{TMP+2}, 4, v{vLIN}", [TMP+2], [vLIN])
    V(f"v_and_b32 v{TMP+3}, 15, v{TMP+2}", [TMP+3], [TMP+2])
    V(f"v_lshrrev_b32 v{TMP+2}, 4, v{TMP+2}", [TMP+2], [TMP+2])
    V(f"v_lshlrev_b32 v{TMP+3}, 11, v{TMP+3}", [TMP+3], [TMP+3])
    V(f"v_lshl_add_u32 v{TMP+3}, v{TMP+2}, 6, v{TMP+3}", [TMP+3], [TMP+2, TMP+3])
    return TMP + 3

attention(WIN_B, WIN_B2, FL["bk"], FL["bv"], True)
g.wait_all()
n_b = c.nstamp
g.salu("s_branch TAIL")
g.label("A_PATH")
restore(snap)
attention(WIN_A, WIN_A, FL["ak"], FL["av"], False)
S(f"s_lshl_b32 s6, s{S_XCD}, 1", [6], [S_XCD])
S(f"s_add_u32 s6, s6, s{S_SUB}", [6], [6, S_SUB])
S("s_lshl_b32 s6, s6, 18", [6], [6])
S(f"s_lshl_b32 s7, s{S_NT}, 8", [7], [S_NT])
S("s_add_u32 s6, s6, s7", [6], [6, 7])
S("s_sub_u32 s7, 0x400000, s6", [7], [6])
c.srd(SRD_W, 16, 6, "s7")
of = Fifo(g, [RING + 32*i for i in range(6)])
for s in range(8): of.add(s, L.wo(SRD_W, 128*(s >> 2) + 8*(s & 3)))
for _ in range(48): of.issue1()
S(f"s_lshl_b32 s6, s{S_MT2}, 19", [6], [S_MT2])
S(f"s_lshl_b32 s7, s{S_XCD}, 15", [7], [S_XCD])
S("s_add_u32 s6, s6, s7", [6], [6, 7])
S(f"s_lshl_b32 s7, s{S_SUB}, 14", [7], [S_SUB])
S("s_add_u32 s6, s6, s7", [6], [6, 7])
S(f"s_add_u32 s6, s6, {WS_O:#x}", [6], [6])
c.srd(SRD_X, 32, 6, 0x40000 + 16384)
S(f"s_lshl_b32 s6, s{S_XCD}, 8", [6], [S_XCD])
S(f"s_lshl_b32 s7, s{S_MT2}, 5", [7], [S_MT2])
S(f"s_add_u32 s{S_U}, s6, s7", [S_U], [6, 7])
V(f"v_lshrrev_b32 v{TMP+1}, 2, v{vLIN}", [TMP+1], [vLIN])
poll_global(SRD_F, TMP+1, f"s{S_U}", 1, lanes=8)
c.stamp()
otok = {}
for hh in range(2):
    for bb in range(2):
        for f in range(8):
            otok[(hh, bb)] = L.ld(128 + 64*hh + 32*bb + 4*f, vLIN, SRD_X, bb*0x40000 + hh*8192 + f*1024, flags=SC, kind="a")
pacc = lambda bb: (lambda j, qb: ("a", 64*bb + 8*j + 4*qb))
for s in range(8):
    hh, r = s >> 2, s & 3
    while s not in of.tok: of.issue1()
    of.wait(s)
    g.wait_vm(otok[(hh, 1)])
    def rel(s=s):
        of.release(s)
        while of.can(): of.issue1()
    c.tile_gemm(of.slot[s], [(lambda qb, bb=bb: ("a", 128 + 64*hh + 32*bb + 8*r + 4*qb), pacc(bb)) for bb in range(2)], s == 0, after_perms=rel)
S(f"s_cmp_eq_u32 s{S_SUB}, 0", [], [S_SUB])
g.salu("s_cbranch_scc0 XA_s1")
sn = snapshot()
def xsend(own):
    for q in range(16):
        a = 64*(1-own) + 4*q
        g.emit(Ins(f"ds_write_b128 v{vFW}, a[{a}:{a+3}] offset:{q*1024}", "dsw", r=[("v", vFW)] + R("a", a, 4)))
    for q in range(64):
        V(f"v_accvgpr_read_b32 v{RING + q}, a{64*own + q}", [RING + q], [("a", 64*own + q)])
xsend(0)
g.salu("s_branch XA_j")
g.label("XA_s1")
restore(sn)
xsend(1)
g.label("XA_j")
g.raw("    s_nop 1"); g.pos += 2
lds_set(LF_X)
lds_wait(LF_X)
S(f"s_sub_u32 s6, {5*WB}, s{S_KB}", [6], [S_KB])
V(f"v_add_u32 v{TMP+4}, s6, v{vLIN}", [TMP+4], [("s", 6), vLIN])
for q in range(16):
    last = g.ds_read(RING + 64 + 4*q, 4, TMP+4, off=q*1024)
S(f"s_lshl_b32 s6, s{S_MT2}, 1", [6], [S_MT2])
S(f"s_add_u32 s6, s6, s{S_SUB}", [6], [6, S_SUB])
S("s_lshl_b32 s6, s6, 3", [6], [6])
S(f"s_add_u32 s6, s6, s{S_XCD}", [6], [6, S_XCD])
S("s_lshl_b32 s6, s6, 2", [6], [6])
S(f"s_add_u32 s6, s6, s{S_NT}", [6], [6, S_NT])
S("s_lshl_b32 s6, s6, 14", [6], [6])
S(f"s_add_u32 s6, s6, {WS_P:#x}", [6], [6])
c.srd(SRD_Y, 32, 6, 16384)
c.lgk0()
k = 0
for qb in range(2):
    for r in range(4):
        b = RING + 128 + 8*k; k += 1
        for j in range(8):
            q = 8*j + 4*qb + r
            V(f"v_add_f32 v{b+j}, v{RING + q}, v{RING + 64 + q}", [b+j], [RING + q, RING + 64 + q])
        S(f"s_mov_b32 s7, {(qb*4 + r)*2048:#x}", [7])
        g.bstore(("v", b), 4, vLIN, SRD_Y, "s7", flags=SC)
        g.bstore(("v", b+4), 4, vLIN, SRD_Y, "s7", imm=1024, flags=SC)
publish(S_FPA)
c.stamp()
S(f"s_lshl_b32 s6, s{S_XCD}, 1", [6], [S_XCD])
S(f"s_add_u32 s6, s6, s{S_SUB}", [6], [6, S_SUB])
S("s_lshl_b32 s6, s6, 18", [6], [6])
S(f"s_lshl_b32 s7, s{S_NT}, 8", [7], [S_NT])
S("s_add_u32 s6, s6, s7", [6], [6, 7])
S("s_sub_u32 s7, 0x400000, s6", [7], [6])
c.srd(SRD_W, 26, 6, "s7")
sf = Fifo(g, [RING + 32*i for i in range(6)])
for s in range(8): sf.add(s, L.wo(SRD_W, 128*(s >> 2) + 8*(s & 3)))
for _ in range(48): sf.issue1()
lds_set(LF_X + 16)
lds_wait(LF_X + 16)
lds_wait(LF_KB)
S(f"s_lshl_b32 s6, s{S_SUB}, 16", [6], [S_SUB])
V(f"v_add_u32 v{TMP+4}, s6, v{vLIN}", [TMP+4], [("s", 6), vLIN])
for s in range(8):
    while s not in sf.tok: sf.issue1()
    sf.wait(s)
    if s: c.lgk0()
    for j in range(8):
        c.transpose_j(T + 4*j, sf.slot[s], j)
        g.ds_write(TMP+4, T + 4*j, 4, off=(s*8 + j)*1024)
    sf.release(s)
    while sf.can(): sf.issue1()
c.stamp()
S("s_lshl_b32 s6, s2, 1", [6], [2])
S(f"s_add_u32 s6, s6, s{S_SUB}", [6], [6, S_SUB])
S("s_lshr_b32 s86, s6, 5", [86], [6])
S("s_and_b32 s87, s6, 31", [87], [6])
S("s_lshl_b32 s6, s86, 19", [6], [86])
S("s_lshl_b32 s7, s87, 11", [7], [87])
S("s_add_u32 s6, s6, s7", [6], [6, 7])
S(f"s_add_u32 s6, s6, {WS_P:#x}", [6], [6])
S("s_sub_u32 s7, 0x80000, s7", [7], [7])
c.srd(SRD_X, 32, 6, "s7")
S("s_lshl_b32 s6, s86, 2", [6], [86])
S("s_lshr_b32 s7, s87, 3", [7], [87])
S("s_add_u32 s6, s6, s7", [6], [6, 7])
S("s_lshl_b32 s6, s6, 5", [6], [6])
S(f"s_add_u32 s{S_U}, s6, {F_PA}", [S_U], [6])
V(f"v_lshrrev_b32 v{TMP+1}, 2, v{vLIN}", [TMP+1], [vLIN])
poll_global(SRD_F, TMP+1, f"s{S_U}", 1, lanes=8)
toks = []
for p in range(8):
    L.ld(RING + 8*p, vLIN, SRD_X, p*65536, flags=SC)
    toks.append(L.ld(RING + 8*p + 4, vLIN, SRD_X, p*65536 + 1024, flags=SC))
vo = out_srd(0, 86, 87)
for p in range(1, 8):
    g.wait_vm(toks[p])
    for e in range(8):
        V(f"v_add_f32 v{RING+e}, v{RING+e}, v{RING+8*p+e}", [RING+e], [RING+e, RING+8*p+e])
for p in range(4):
    V(f"v_cvt_pk_bf16_f32 v{RING+p}, v{RING+2*p}, v{RING+2*p+1}", [RING+p], [RING+2*p, RING+2*p+1])
g.bstore(("v", RING), 4, vo, SRD_Z, "0")
c.stamp()
g.wait_all()
g.label("TAIL")
g.raw("    s_nop 7"); g.pos += 100
sync_state()
c.nstamp = 16
g.salu("s_barrier")
c.stamp()
S(f"s_lshl_b32 s86, s{S_MT2}, 1", [86], [S_MT2])
S(f"s_lshr_b32 s6, s{S_WV}, 1", [6], [S_WV])
S("s_add_u32 s86, s86, s6", [86], [86, 6])
S("s_add_u32 s6, s86, 16", [6], [86])
S("s_lshl_b32 s6, s6, 18", [6], [6])
S(f"s_lshl_b32 s7, s{S_XCD}, 15", [7], [S_XCD])
S("s_add_u32 s6, s6, s7", [6], [6, 7])
S(f"s_lshl_b32 s7, s{S_SUB}, 10", [7], [S_SUB])
S("s_add_u32 s6, s6, s7", [6], [6, 7])
S(f"s_add_u32 s6, s6, {WS_O:#x}", [6], [6])
S("s_sub_u32 s7, 0x8000, s7", [7], [7])
c.srd(SRD_X, 32, 6, "s7")
S("s_add_u32 s6, s86, 16", [6], [86])
S("s_lshl_b32 s6, s6, 3", [6], [6])
S(f"s_add_u32 s6, s6, s{S_XCD}", [6], [6, S_XCD])
S("s_lshl_b32 s6, s6, 2", [6], [6])
S(f"s_add_u32 s6, s6, s{S_NT}", [6], [6, S_NT])
S("s_lshl_b32 s6, s6, 14", [6], [6])
S(f"s_lshl_b32 s7, s{S_SUB}, 13", [7], [S_SUB])
S("s_add_u32 s6, s6, s7", [6], [6, 7])
S(f"s_add_u32 s6, s6, {WS_P:#x}", [6], [6])
c.srd(SRD_Y, 32, 6, 8192)
NPRE_V, NPRE_A = 48, 40
def frag_reg(n):
    if n < NPRE_V: return ("v", RING + 4*n)
    if n < NPRE_V + NPRE_A: return ("a", 96 + 4*(n - NPRE_V))
    return ("v", RING + 4*(n - NPRE_V - NPRE_A))
ftok = {}
def fread(n):
    a, o = lds_addr(n*1024)
    kd_, base = frag_reg(n)
    ftok[n] = g.ds_read(base, 4, a, off=o, kind=kd_)
for n in range(NPRE_V + NPRE_A): fread(n)
S(f"s_add_u32 s6, s{S_XCD}, 8", [6], [S_XCD])
S("s_lshl_b32 s6, s6, 4", [6], [6])
S("s_add_u32 s6, s6, s86", [6], [6, 86])
S(f"s_lshl_b32 s{S_U}, s6, 4", [S_U], [6])
V(f"v_lshrrev_b32 v{TMP+1}, 2, v{vLIN}", [TMP+1], [vLIN])
poll_global(SRD_F, TMP+1, f"s{S_U}", 1, lanes=4)
c.stamp()
otok = [L.ld(4*ks, vLIN, SRD_X, (ks >> 2)*8192 + (ks & 3)*2048, flags=SC, kind="a") for ks in range(16)]
c.lgk0()
for n in range(128):
    ks, j = n >> 3, n & 7
    if j == 0: g.wait_vm(otok[ks])
    g.wait_lg(ftok[n])
    d = ("a", 64 + 4*j)
    g.mfma16(d, frag_reg(n), ("a", 4*ks), None if ks == 0 else d)
    m = n + NPRE_V + NPRE_A - 4
    if NPRE_V + NPRE_A <= m < 128: fread(m)
c.stamp()
for r in range(4):
    b = T + 8*r
    for j in range(8):
        V(f"v_accvgpr_read_b32 v{b+j}, a{64 + 4*j + r}", [b+j], [("a", 64 + 4*j + r)])
    S(f"s_mov_b32 s7, {r*2048:#x}", [7])
    g.bstore(("v", b), 4, vLIN, SRD_Y, "s7", flags=SC)
    g.bstore(("v", b+4), 4, vLIN, SRD_Y, "s7", imm=1024, flags=SC)
S("s_lshl_b32 s6, s2, 2", [6], [2])
S(f"s_add_u32 s6, s6, s{S_WV}", [6], [6, S_WV])
S("s_lshr_b32 s86, s6, 6", [86], [6])
S("s_lshr_b32 s87, s6, 1", [87], [6])
S("s_and_b32 s87, s87, 31", [87], [87])
S("s_add_u32 s6, s86, 16", [6], [86])
S("s_lshl_b32 s6, s6, 19", [6], [6])
S("s_lshl_b32 s7, s87, 11", [7], [87])
S(f"s_lshl_b32 s90, s{S_SUB}, 10", [90], [S_SUB])
S("s_add_u32 s7, s7, s90", [7], [7, 90])
S("s_add_u32 s6, s6, s7", [6], [6, 7])
S(f"s_add_u32 s6, s6, {WS_P:#x}", [6], [6])
S("s_sub_u32 s7, 0x80000, s7", [7], [7])
c.srd(SRD_X, 32, 6, "s7")
S(f"s_lshl_b32 s90, s{S_SUB}, 3", [90], [S_SUB])
vo = out_srd(1, 86, 87, extra=90)
S("s_lshl_b32 s6, s86, 3", [6], [86])
S("s_lshr_b32 s7, s87, 2", [7], [87])
S("s_add_u32 s6, s6, s7", [6], [6, 7])
S("s_lshl_b32 s6, s6, 5", [6], [6])
S(f"s_add_u32 s{S_U}, s6, {F_PB}", [S_U], [6])
V(f"v_lshrrev_b32 v{TMP+1}, 2, v{vLIN}", [TMP+1], [vLIN])
publish(S_FPB)
c.stamp()
poll_global(SRD_F, TMP+1, f"s{S_U}", 1, lanes=8)
c.stamp()
toks = [L.ld(RING + 4*p, vLIN, SRD_X, p*65536, flags=SC) for p in range(8)]
for p in range(1, 8):
    g.wait_vm(toks[p])
    for e in range(4):
        V(f"v_add_f32 v{RING+e}, v{RING+e}, v{RING+4*p+e}", [RING+e], [RING+e, RING+4*p+e])
for p in range(2):
    V(f"v_cvt_pk_bf16_f32 v{RING+p}, v{RING+2*p}, v{RING+2*p+1}", [RING+p], [RING+2*p, RING+2*p+1])
g.bstore(("v", RING), 2, vo, SRD_Z, "0")
c.stamp_flush()
g.label("K_END")
g.raw("    s_endpgm")
g.raw('.section .rodata,"a"')
g.raw(kd(KN, 512, 256))
open(OUT, "w").write(g.text())
print("wrote", OUT, len(g.text()), "bytes; lds", L_END)
```

```python
import sys, math, struct
from asmgen import *

NAME = "concat_heads__gqa_block_cached__mha_block_cached__near_ridge"
def f32bits(x):
    return struct.unpack("<I", struct.pack("<f", x))[0]
SCALE_LOG2E = f32bits(math.log2(math.e) / math.sqrt(128.0))
HEADER = open(f"cdna_kernels/{NAME}.s.ref").read().split("; Override launch geometry")[0]
KSLOT = 8 * 1040

S_WV, S_XCD, S_J = 3, 4, 5
S_LO, S_HI = 38, 39
S_STAMP = 88
S_C, S_OFF, S_KB, S_T = 96, 97, 98, 100
vLIN, vKD, vKR, vWQ, vWO = 0, 1, 2, 3, 4
TMP = 10
STV = 31
T = 32
RING = 64
vM = [TMP + 16, TMP + 17]
vL = [TMP + 18, TMP + 19]

class Ctx:
    def __init__(self, g, stamps=False, stamp_base=64 << 20):
        self.g, self.stamps, self.stamp_base = g, stamps, stamp_base
        self.nstamp = 0
        self.nlabel = 0
    def S(self, t, w=(), r=()):
        return self.g.salu(t, w=[("s", x) if isinstance(x, int) else x for x in w], r=[("s", x) for x in r])
    def V(self, t, w=(), r=(), kind="valu"):
        cv = lambda x: ("v", x) if isinstance(x, int) else x
        return self.g.valu(t, w=[cv(x) for x in w], r=[cv(x) for x in r], kind=kind)
    def srd(self, d, plo, soff, nrec):
        S, g = self.S, self.g
        save, g.in_tick = g.in_tick, True
        S(f"s_add_u32 s{d}, s{plo}, s{soff}", [d], [plo, soff])
        S(f"s_addc_u32 s{d+1}, s{plo+1}, 0", [d+1], [plo+1])
        S(f"s_and_b32 s{d+1}, s{d+1}, 0xffff", [d+1], [d+1])
        S(f"s_mov_b32 s{d+2}, {nrec}", [d+2])
        S(f"s_mov_b32 s{d+3}, 0x20000", [d+3])
        g.in_tick = save
    def lgk0(self):
        self.g.emit(Ins("s_waitcnt lgkmcnt(0)", "wait")); self.g.lg_done = self.g.lg_issued
    def barrier(self):
        self.lgk0()
        self.g.salu("s_barrier")
    def stamp(self):
        if not self.stamps: return
        g = self.g
        g.salu(f"s_memrealtime s[{S_STAMP}:{S_STAMP+1}]", w=R("s", S_STAMP, 2))
        self.lgk0()
        g.valu(f"v_writelane_b32 v{STV}, s{S_STAMP}, {self.nstamp}", w=[("v", STV)], r=[("s", S_STAMP), ("v", STV)])
        g.salu(f"s_memtime s[{S_STAMP}:{S_STAMP+1}]", w=R("s", S_STAMP, 2))
        self.lgk0()
        g.valu(f"v_writelane_b32 v{STV}, s{S_STAMP}, {32 + self.nstamp}", w=[("v", STV)], r=[("s", S_STAMP), ("v", STV)])
        self.nstamp += 1
    def stamp_flush(self):
        if not self.stamps: return
        g, S, V = self.g, self.S, self.V
        g.tick = None
        g.wait_all()
        self.stamp()
        S("s_lshl_b32 s7, s2, 2", [7], [2])
        S(f"s_add_u32 s7, s7, s{S_WV}", [7], [7, S_WV])
        S("s_lshl_b32 s6, s7, 8", [6], [7])
        S(f"s_add_u32 s6, s6, {self.stamp_base:#x}", [6], [6])
        self.srd(88, 32, 6, 256)
        V(f"v_lshrrev_b32 v{TMP}, 2, v{vLIN}", [TMP], [vLIN])
        g.bstore(("v", STV), 1, TMP, 88, "0")
        g.wait_all()
        if getattr(self, "dbgwg", None) is not None:
            S(f"s_lshl_b32 s6, s2, 2", [6], [2])
            S(f"s_add_u32 s6, s6, s{S_WV}", [6], [6, S_WV])
            S(f"s_cmp_eq_u32 s6, {self.dbgwg*4}", [], [6])
            self.nlabel += 1
            g.salu(f"s_cbranch_scc0 NODBG{self.nlabel}")
            S("s_mov_b32 s6, 0", [6])
            self.srd(88, 30, 6, 64)
            g.raw("    s_nop 4")
            g.raw(f"    v_readlane_b32 s6, v{STV}, 0")
            g.raw("    s_nop 4")
            g.raw(f"    v_subrev_u32 v{STV}, s6, v{STV}")
            g.raw(f"    buffer_store_dword v{STV}, v{TMP}, s[88:91], 0 offen")
            g.raw("    s_waitcnt vmcnt(0)")
            g.label(f"NODBG{self.nlabel}")
    def transpose_j(self, Tb, raw, j):
        w = j >> 1
        sel = S_HI if (j & 1) else S_LO
        for p in range(4):
            a = raw + (2*p) * 4 + w
            b = raw + (2*p+1) * 4 + w
            self.V(f"v_perm_b32 v{Tb+p}, v{b}, v{a}, s{sel}", [Tb+p], [a, b, ("s", sel)])
    def tile_gemm(self, raw, pairs, first, after_perms=None, fill=()):
        g = self.g
        fill = list(fill)
        per = (len(fill) + 7) // 8
        for j in range(9):
            if j < 8:
                self.transpose_j(T + 4*j, raw, j)
            if j == 7 and after_perms: after_perms()
            if j >= 1:
                for bop, acc in pairs:
                    for qb in range(2):
                        d = acc(j-1, qb)
                        g.mfma16(d, ("v", T + 4*(j-1)), bop(qb), None if first else d)
                for op in fill[(j-1)*per:j*per]: op()
    def xlane(self, reg, op):
        V = self.V
        t0 = TMP
        V(f"v_mov_b32 v{t0}, v{reg}", [t0], [reg])
        V(f"v_permlane32_swap_b32 v{reg}, v{t0}", [reg, t0], [reg, t0], kind="perml")
        V(f"{op} v{reg}, v{reg}, v{t0}", [reg], [reg, t0])
        V(f"v_mov_b32 v{t0}, v{reg}", [t0], [reg])
        V(f"v_permlane16_swap_b32 v{reg}, v{t0}", [reg, t0], [reg, t0], kind="perml")
        V(f"{op} v{reg}, v{reg}, v{t0}", [reg], [reg, t0])
    def prologue(self, name, endlabel, lds_wave_bytes):
        g, S, V = self.g, self.S, self.V
        g.raw(".p2align 8")
        g.raw(f".globl {name}")
        g.raw(f".type {name},@function")
        g.label(name)
        g.reset_state()
        S("s_cmp_ge_u32 s2, 256", [], [2])
        g.salu(f"s_cbranch_scc1 {endlabel}")
        g.salu("s_load_dwordx16 s[8:23], s[0:1], 0", w=R("s", 8, 16))
        g.salu("s_load_dwordx8 s[24:31], s[0:1], 64", w=R("s", 24, 8))
        g.salu("s_load_dwordx2 s[32:33], s[0:1], 96", w=R("s", 32, 2))
        LN, I_, G_, X_, Y_ = TMP, TMP+1, TMP+2, TMP+3, TMP+4
        V("v_lshrrev_b32 v1, 6, v0", [1], [0])
        V(f"v_and_b32 v{LN}, 63, v0", [LN], [0])
        V(f"v_readfirstlane_b32 s{S_WV}, v1", [("s", S_WV)], [1], kind="rfl")
        S(f"s_and_b32 s{S_XCD}, s2, 7", [S_XCD], [2])
        S(f"s_lshr_b32 s{S_J}, s2, 3", [S_J], [2])
        S(f"s_mul_i32 s{S_KB}, s{S_WV}, {lds_wave_bytes}", [S_KB], [S_WV])
        S(f"s_mov_b32 s{S_LO}, 0x05040100", [S_LO])
        S(f"s_mov_b32 s{S_HI}, 0x07060302", [S_HI])
        S(f"s_mov_b32 s{S_C}, {SCALE_LOG2E:#x}", [S_C])
        V(f"v_and_b32 v{I_}, 15, v{LN}", [I_], [LN])
        V(f"v_lshrrev_b32 v{G_}, 4, v{LN}", [G_], [LN])
        V(f"v_lshlrev_b32 v{vLIN}, 4, v{LN}", [vLIN], [LN])
        V(f"v_lshlrev_b32 v{X_}, 2, v{G_}", [X_], [G_])
        V(f"v_xor_b32 v{X_}, v{X_}, v{I_}", [X_], [X_, I_])
        V(f"v_lshlrev_b32 v{X_}, 4, v{X_}", [X_], [X_])
        V(f"v_lshl_add_u32 v{vKD}, v{G_}, 10, v{X_}", [vKD], [G_, X_])
        V(f"v_lshrrev_b32 v{X_}, 2, v{I_}", [X_], [I_])
        V(f"v_mul_u32_u24 v{X_}, 1040, v{X_}", [X_], [X_])
        V(f"v_and_b32 v{Y_}, 3, v{I_}", [Y_], [I_])
        V(f"v_lshl_add_u32 v{X_}, v{Y_}, 8, v{X_}", [X_], [Y_, X_])
        V(f"v_xor_b32 v{Y_}, v{Y_}, v{G_}", [Y_], [Y_, G_])
        V(f"v_lshl_add_u32 v{X_}, v{Y_}, 6, v{X_}", [X_], [Y_, X_])
        V(f"v_add_u32 v{vKR}, s{S_KB}, v{X_}", [vKR], [("s", S_KB), X_])
        V(f"v_lshlrev_b32 v{X_}, 4, v{I_}", [X_], [I_])
        V(f"v_lshl_add_u32 v{vWQ}, v{G_}, 18, v{X_}", [vWQ], [G_, X_])
        V(f"v_lshl_add_u32 v{vWO}, v{G_}, 15, v{X_}", [vWO], [G_, X_])
        if self.stamps: V(f"v_mov_b32 v{STV}, 0", [STV])
        self.lgk0()
        self.stamp()

class Fifo:
    def __init__(self, g, slots):
        self.g, self.slots = g, slots
        self.order, self.next, self.sub, self.busy, self.tok, self.slot = [], 0, 0, {}, {}, {}
    def add(self, name, fn):
        slot = self.slots[len(self.order) % len(self.slots)]
        self.order.append((name, slot, fn(slot))); self.slot[name] = slot
    def can(self):
        if self.next >= len(self.order): return False
        name, slot, th = self.order[self.next]
        if self.sub == 0 and slot in self.busy: return False
        return self.g.outstanding() < 62
    def issue1(self):
        name, slot, th = self.order[self.next]
        if self.sub == 0: self.busy[slot] = name
        save, self.g.in_tick = self.g.in_tick, True
        t = th[self.sub]()
        self.g.in_tick = save
        self.sub += 1
        if self.sub == len(th):
            self.tok[name] = t; self.next += 1; self.sub = 0
    def wait(self, name):
        assert name in self.tok, name
        self.g.wait_vm(self.tok[name])
    def release(self, name):
        del self.busy[self.slot[name]]

class WinPacer:
    def __init__(self, g, seq, win, pace):
        self.g, self.seq, self.i, self.win, self.pace, self.last = g, seq, 0, win, pace, -1000
    def cur(self):
        while self.i < len(self.seq) and self.seq[self.i][1] in self.seq[self.i][0].tok: self.i += 1
        return self.seq[self.i][0] if self.i < len(self.seq) else None
    def step(self):
        g, f = self.g, self.cur()
        if f is None: return False
        name, slot, th = f.order[f.next]
        if f.sub == 0 and slot in f.busy: return False
        save, g.in_tick = g.in_tick, True
        if g.outstanding() >= self.win: g.wait_vm(g.vm_issued - self.win)
        g.in_tick = save
        f.issue1()
        self.last = g.now
        return True
    def fill(self, n=10**9):
        while n > 0 and self.step(): n -= 1
    def need(self, f, name):
        while name not in f.tok:
            assert self.step(), f"{name} cannot be issued"
    def __call__(self):
        if self.g.now - self.last >= self.pace: self.step()

class Loads:
    def __init__(self, c):
        self.c = c
    def dma(self, slot, idx, srd, off, imm, flags=""):
        c, g = self.c, self.c.g
        m0 = slot*KSLOT + idx*1040 - imm
        assert m0 >= 0
        c.S(f"s_add_u32 m0, s{S_KB}, {m0:#x}", [("m0", 0)], [S_KB])
        c.S(f"s_mov_b32 s{S_OFF}, {off:#x}", [S_OFF])
        t = f"buffer_load_dwordx4 v{vKD}, s[{srd}:{srd+3}], s{S_OFF} offen"
        if imm: t += f" offset:{imm}"
        if flags: t += " " + flags
        t += " lds"
        return g.emit(Ins(t, "ldsdma", r=[("v", vKD), ("s", S_OFF)] + R("s", srd, 4)))
    def ld(self, dst, voff, srd, off, flags="", kind="v"):
        imm = off & 0xfff if (off & 0xfff) and False else 0
        self.c.S(f"s_mov_b32 s{S_OFF}, {off:#x}", [S_OFF])
        return self.c.g.bload((kind, dst), 4, voff, srd, f"s{S_OFF}", flags=flags)
    def k(self, srd, off, flags=""):
        return lambda slot: [(lambda kb=kb, jj=jj: self.dma(slot, 4*kb + jj, srd, off + kb*4096, jj*256, flags)) for kb in range(2) for jj in range(4)]
    def x(self, srd, off):
        return lambda slot: [(lambda idx=idx: self.dma(slot, idx, srd, off + idx*4096, 0)) for idx in range(8)]
    def v(self, srd, off, flags="", kind="v"):
        return lambda slot: [(lambda jj=jj: self.ld(slot + 4*jj, vLIN, srd, off + jj*1024, flags, kind)) for jj in range(8)]
    def w(self, srd, row0, coloff=0):
        return lambda slot: [(lambda jj=jj: self.ld(slot + 4*jj, vWQ, srd, (row0 + jj)*8192 + coloff)) for jj in range(8)]
    def wo(self, srd, row0, coloff=0):
        return lambda slot: [(lambda jj=jj: self.ld(slot + 4*jj, vWO, srd, (row0 + jj)*1024 + coloff)) for jj in range(8)]

def attn_helpers(c):
    V, g = c.V, c.g
    def read_ktile(slot, kind, dst):
        for kb in range(2):
            for s in range(4):
                last = g.ds_read(dst + 16*kb + 4*s, 4, vKR, off=slot*KSLOT + kb*4160 + s*16, kind=kind)
        return last
    def s_mfmas(t, kfr, qfr):
        for s in range(4):
            for kb in range(2):
                for qb in range(2):
                    d = ("a", 16*t + 8*kb + 4*qb)
                    g.mfma16(d, (kfr[0], kfr[1] + 16*kb + 4*s), (qfr[0], qfr[1] + 8*s + 4*qb), None if s == 0 else d)
    def max_tile(t):
        for qb in range(2):
            for kb in range(2):
                for r in range(4):
                    a, x = 16*t + 8*kb + 4*qb + r, TMP + 8*qb + 4*kb + r
                    V(f"v_accvgpr_read_b32 v{x}, a{a}", [x], [("a", a)])
        for qb in range(2):
            b, m = TMP + 8*qb, vM[qb]
            if t == 0:
                V(f"v_max3_f32 v{m}, v{b}, v{b+1}, v{b+2}", [m], [b, b+1, b+2])
                V(f"v_max3_f32 v{m}, v{m}, v{b+3}, v{b+4}", [m], [m, b+3, b+4])
                V(f"v_max3_f32 v{m}, v{m}, v{b+5}, v{b+6}", [m], [m, b+5, b+6])
                V(f"v_max_f32 v{m}, v{m}, v{b+7}", [m], [m, b+7])
            else:
                for p in range(4):
                    V(f"v_max3_f32 v{m}, v{m}, v{b+2*p}, v{b+2*p+1}", [m], [m, b+2*p, b+2*p+1])
    def finish_max():
        for qb in range(2):
            c.xlane(vM[qb], "v_max_f32")
            V(f"v_mul_f32 v{vM[qb]}, s{S_C}, v{vM[qb]}", [vM[qb]], [vM[qb], ("s", S_C)])
            V(f"v_mov_b32 v{vL[qb]}, 0", [vL[qb]])
    def exp_ops(t):
        ops = []
        for qb in range(2):
            for kb in range(2):
                for r in range(4):
                    a, x = 16*t + 8*kb + 4*qb + r, TMP + 8*qb + 4*kb + r
                    ops.append(lambda a=a, x=x: V(f"v_accvgpr_read_b32 v{x}, a{a}", [x], [("a", a)]))
        for e in range(16):
            ops.append(lambda x=TMP + e, m=vM[e >> 3]: V(f"v_fma_f32 v{x}, v{x}, s{S_C}, -v{m}", [x], [x, ("s", S_C), m]))
        for e in range(16):
            ops.append(lambda x=TMP + e: V(f"v_exp_f32 v{x}, v{x}", [x], [x], kind="trans"))
        for e in range(16):
            ops.append(lambda x=TMP + e, l=vL[e >> 3]: V(f"v_add_f32 v{l}, v{l}, v{x}", [l], [l, x]))
        for p in range(8):
            ops.append(lambda x=TMP + 2*p: V(f"v_cvt_pk_bf16_f32 v{x}, v{x}, v{x+1}", [x], [x, x+1]))
        for p in range(8):
            ops.append(lambda x=TMP + 2*p, a=16*t + p: V(f"v_accvgpr_write_b32 a{a}, v{x}", [("a", a)], [x]))
        return ops
    return read_ktile, s_mfmas, max_tile, finish_max, exp_ops

def kd(name, vgpr, accum, sgpr=102):
    return f""".p2align 6
.amdhsa_kernel {name}
  .amdhsa_next_free_vgpr {vgpr}
  .amdhsa_next_free_sgpr {sgpr}
  .amdhsa_accum_offset {accum}
  .amdhsa_group_segment_fixed_size 0
  .amdhsa_kernarg_size 104
  .amdhsa_user_sgpr_count 2
  .amdhsa_user_sgpr_kernarg_segment_ptr 1
  .amdhsa_system_sgpr_workgroup_id_x 1
.end_amdhsa_kernel
"""
```

```python
from common import *
OUT = sys.argv[1] if len(sys.argv) > 1 else f"cdna_kernels/{NAME}.s"
OPTS = dict(a.split("=") for a in sys.argv[2:])
KFL = OPTS.get("k", OPTS.get("kv", "")).replace("+", " ")
VFL = OPTS.get("v", OPTS.get("kv", "")).replace("+", " ")
STK = OPTS.get("stamps", "")
WIN = int(OPTS.get("win", "32"))
PACE = int(OPTS.get("pace", "24"))
NKS = 4
WS_Q, WS_O, WS_P = 0, 8 << 20, 16 << 20

def gen_gemm(g, mode):
    c = Ctx(g, stamps=(STK == mode))
    S, V = c.S, c.V
    L = Loads(c)
    name = {"q": "qproj_kernel", "o": "oproj_kernel"}[mode]
    end = name.upper() + "_END"
    WB = 4 * KSLOT
    c.prologue(name, end, WB)
    read_ktile = attn_helpers(c)[0]
    S_AB, S_MT, S_COL, S_BB = 34, 35, 36, 37
    SRD_W, SRD_B, SRD_Y = 40, 44, 48
    if mode == "q":
        S(f"s_lshr_b32 s{S_AB}, s{S_J}, 4", [S_AB], [S_J])
        S(f"s_lshr_b32 s{S_MT}, s{S_J}, 2", [S_MT], [S_J])
        S(f"s_and_b32 s{S_MT}, s{S_MT}, 3", [S_MT], [S_MT])
        S(f"s_and_b32 s6, s{S_J}, 3", [6], [S_J])
        S(f"s_lshl_b32 s{S_COL}, s{S_XCD}, 2", [S_COL], [S_XCD])
        S(f"s_add_u32 s{S_COL}, s{S_COL}, s6", [S_COL], [S_COL, 6])
        S(f"s_lshl_b32 s{S_BB}, s{S_MT}, 2", [S_BB], [S_MT])
        S(f"s_add_u32 s{S_BB}, s{S_BB}, s{S_WV}", [S_BB], [S_BB, S_WV])
        S(f"s_cmp_eq_u32 s{S_AB}, 0", [], [S_AB])
        S("s_cselect_b64 s[18:19], s[8:9], s[18:19]", [18, 19], [8, 9, 18, 19])
        S("s_cselect_b64 s[24:25], s[14:15], s[24:25]", [24, 25], [14, 15, 24, 25])
        S(f"s_lshl_b32 s6, s{S_BB}, 15", [6], [S_BB])
        c.srd(SRD_B, 18, 6, 32768)
        S(f"s_lshl_b32 s6, s{S_WV}, 20", [6], [S_WV])
        S(f"s_lshl_b32 s7, s{S_COL}, 8", [7], [S_COL])
        S("s_add_u32 s6, s6, s7", [6], [6, 7])
        S("s_sub_u32 s7, 0x400000, s6", [7], [6])
        c.srd(SRD_W, 24, 6, "s7")
    else:
        S(f"s_lshr_b32 s{S_AB}, s{S_J}, 4", [S_AB], [S_J])
        S(f"s_lshr_b32 s{S_MT}, s{S_J}, 2", [S_MT], [S_J])
        S(f"s_and_b32 s{S_MT}, s{S_MT}, 3", [S_MT], [S_MT])
        S(f"s_and_b32 s{S_COL}, s{S_J}, 3", [S_COL], [S_J])
        S(f"s_lshl_b32 s{S_BB}, s{S_MT}, 2", [S_BB], [S_MT])
        S(f"s_add_u32 s{S_BB}, s{S_BB}, s{S_WV}", [S_BB], [S_BB, S_WV])
        S(f"s_cmp_eq_u32 s{S_AB}, 0", [], [S_AB])
        S("s_cselect_b64 s[26:27], s[16:17], s[26:27]", [26, 27], [16, 17, 26, 27])
        S(f"s_lshl_b32 s6, s{S_AB}, 4", [6], [S_AB])
        S(f"s_add_u32 s6, s6, s{S_BB}", [6], [6, S_BB])
        S("s_lshl_b32 s6, s6, 18", [6], [6])
        S(f"s_lshl_b32 s7, s{S_XCD}, 15", [7], [S_XCD])
        S("s_add_u32 s6, s6, s7", [6], [6, 7])
        S(f"s_add_u32 s6, s6, {WS_O:#x}", [6], [6])
        c.srd(SRD_B, 32, 6, 32768)
        S(f"s_lshl_b32 s6, s{S_XCD}, 2", [6], [S_XCD])
        S(f"s_add_u32 s6, s6, s{S_WV}", [6], [6, S_WV])
        S("s_lshl_b32 s6, s6, 17", [6], [6])
        S(f"s_lshl_b32 s7, s{S_COL}, 8", [7], [S_COL])
        S("s_add_u32 s6, s6, s7", [6], [6, 7])
        S("s_sub_u32 s7, 0x400000, s6", [7], [6])
        c.srd(SRD_W, 26, 6, "s7")
    wf = Fifo(g, [RING + 32*i for i in range(4)])
    bf = Fifo(g, list(range(4)) if mode == "q" else [32*i for i in range(4)])
    for s in range(4):
        wf.add(s, L.w(SRD_W, 8*s) if mode == "q" else L.wo(SRD_W, 8*s))
        bf.add(s, L.x(SRD_B, s*256) if mode == "q" else L.v(SRD_B, s*8192, kind="a"))
    if mode == "q":
        for _ in range(32): bf.issue1()
        for _ in range(30): wf.issue1()
    else:
        for _ in range(32): wf.issue1()
        for _ in range(30): bf.issue1()
    if mode == "q":
        S(f"s_lshl_b32 s6, s{S_AB}, 4", [6], [S_AB])
        S(f"s_add_u32 s6, s6, s{S_BB}", [6], [6, S_BB])
        S("s_lshl_b32 s6, s6, 5", [6], [6])
        S(f"s_add_u32 s6, s6, s{S_COL}", [6], [6, S_COL])
        S("s_lshl_b32 s6, s6, 13", [6], [6])
        c.srd(SRD_Y, 32, 6, 8192)
    else:
        S(f"s_lshl_b32 s6, s{S_AB}, 4", [6], [S_AB])
        S(f"s_add_u32 s6, s6, s{S_BB}", [6], [6, S_BB])
        S("s_lshl_b32 s6, s6, 3", [6], [6])
        S(f"s_add_u32 s6, s6, s{S_XCD}", [6], [6, S_XCD])
        S("s_lshl_b32 s6, s6, 2", [6], [6])
        S(f"s_add_u32 s6, s6, s{S_COL}", [6], [6, S_COL])
        S("s_lshl_b32 s6, s6, 14", [6], [6])
        S(f"s_add_u32 s6, s6, {WS_P:#x}", [6], [6])
        c.srd(SRD_Y, 32, 6, 16384)
    c.stamp()
    vFW = 5
    V(f"v_add_u32 v{vFW}, s{S_KB}, v{vLIN}", [vFW], [("s", S_KB), vLIN])
    if mode == "q":
        for xq in range(4):
            bf.wait(xq)
            if xq == 0:
                for _ in range(2): wf.issue1()
            last = read_ktile(xq, "a", 32*xq)
        g.wait_lg(last)
        bop = lambda kq, s: (lambda qb: ("a", 32*kq + 16*qb + 4*s))
    else:
        bop = lambda kq, s: (lambda qb: ("a", 32*kq + 8*s + 4*qb))
    c.stamp()
    acc = lambda j, qb: ("a", 128 + 8*j + 4*qb)
    FB = 192
    def stage(s):
        wf.wait(s)
        if mode == "o" and s == 0:
            for _ in range(2): bf.issue1()
        raw = wf.slot[s]
        for j in range(8):
            c.transpose_j(T + 4*j, raw, j)
            g.ds_write(vFW, T + 4*j, 4, off=(s*8 + j)*1024)
    def issue_frag_reads(s, kq, buf):
        for j in range(8):
            off = kq*WB + (s*8 + j)*1024
            last = g.ds_read(FB + 32*buf + 4*j, 4, (vLIN, 6)[off >> 16], off=off & 0xffff)
        return last
    V(f"v_add_u32 v6, 0x10000, v{vLIN}", [6], [vLIN])
    V(f"v_add_u32 v7, 0x20000, v{vLIN}", [7], [vLIN])
    def frag_reads(s, kq, buf):
        toks = []
        for j in range(8):
            off = kq*WB + (s*8 + j)*1024
            toks.append(g.ds_read(FB + 32*buf + 4*j, 4, (vLIN, 6, 7)[off >> 16], off=off & 0xffff))
        return toks
    stage(0)
    first = True
    for s in range(4):
        c.stamp()
        c.barrier()
        c.stamp()
        toks = frag_reads(s, 0, 0)
        if s < 3: stage(s + 1)
        if mode == "o" and s == 0: bf.wait(3)
        for kq in range(4):
            nxt = frag_reads(s, kq + 1, (kq + 1) & 1) if kq < 3 else None
            for j in range(8):
                g.wait_lg(toks[j])
                for qb in range(2):
                    d = acc(j, qb)
                    g.mfma16(d, ("v", FB + 32*(kq & 1) + 4*j), bop(kq, s)(qb), None if first else d)
            first = False
            toks = nxt
    c.stamp()
    k = 0
    for qb in range(2):
        for r in range(4):
            b = RING + 8*k; k += 1
            for j in range(8):
                a = acc(j, qb)[1] + r
                V(f"v_accvgpr_read_b32 v{b+j}, a{a}", [b+j], [("a", a)])
            if mode == "q":
                for p in range(4):
                    V(f"v_cvt_pk_bf16_f32 v{b+p}, v{b+2*p}, v{b+2*p+1}", [b+p], [b+2*p, b+2*p+1])
                S(f"s_mov_b32 s7, {(r*2 + qb)*1024:#x}", [7])
                g.bstore(("v", b), 4, vLIN, SRD_Y, "s7")
            else:
                S(f"s_mov_b32 s7, {(qb*4 + r)*2048:#x}", [7])
                g.bstore(("v", b), 4, vLIN, SRD_Y, "s7")
                g.bstore(("v", b+4), 4, vLIN, SRD_Y, "s7", imm=1024)
    c.stamp_flush()
    g.label(end)
    g.raw("    s_endpgm")

def gen_attn(g):
    c = Ctx(g, stamps=(STK == "a"))
    S, V = c.S, c.V
    L = Loads(c)
    c.prologue("attn_kernel", "ATTN_END", NKS*KSLOT)
    read_ktile, s_mfmas, max_tile, finish_max, exp_ops = attn_helpers(c)
    SRD_K, SRD_V, SRD_Q, SRD_O = 40, 44, 48, 52
    S(f"s_lshr_b32 s34, s{S_J}, 1", [34], [S_J])
    S(f"s_and_b32 s6, s{S_J}, 1", [6], [S_J])
    S("s_lshl_b32 s6, s6, 1", [6], [6])
    S(f"s_lshl_b32 s7, s{S_XCD}, 2", [7], [S_XCD])
    S("s_add_u32 s35, s6, s7", [35], [6, 7])
    S(f"s_and_b32 s6, s{S_WV}, 1", [6], [S_WV])
    S("s_add_u32 s35, s35, s6", [35], [35, 6])
    S("s_lshl_b32 s36, s34, 22", [36], [34])
    S("s_lshl_b32 s6, s35, 17", [6], [35])
    S("s_add_u32 s36, s36, s6", [36], [36, 6])
    S("s_lshl_b32 s37, s34, 20", [37], [34])
    S(f"s_lshl_b32 s6, s{S_XCD}, 17", [6], [S_XCD])
    S("s_add_u32 s37, s37, s6", [37], [37, 6])
    S(f"s_cmp_ge_u32 s{S_WV}, 2", [], [S_WV])
    S("s_cselect_b32 s36, s37, s36", [36], [36, 37])
    S("s_cselect_b64 s[20:21], s[10:11], s[20:21]", [20, 21], [10, 11, 20, 21])
    S("s_cselect_b64 s[22:23], s[12:13], s[22:23]", [22, 23], [12, 13, 22, 23])
    S("s_cselect_b32 s37, 0, 16", [37])
    S("s_add_u32 s6, s37, s34", [6], [37, 34])
    S("s_lshl_b32 s6, s6, 5", [6], [6])
    S("s_add_u32 s6, s6, s35", [6], [6, 35])
    S("s_lshl_b32 s6, s6, 13", [6], [6])
    c.srd(SRD_Q, 32, 6, 8192)
    S(f"s_add_u32 s6, s6, {WS_O:#x}", [6], [6])
    c.srd(SRD_O, 32, 6, 8192)
    c.srd(SRD_K, 20, 36, 131072)
    c.srd(SRD_V, 22, 36, 131072)
    KF = RING + 5*32
    qf = Fifo(g, [T])
    kf = Fifo(g, list(range(NKS)))
    rf = Fifo(g, [RING + 32*i for i in range(5)])
    qf.add("Q", L.v(SRD_Q, 0))
    for t in range(16):
        kf.add(t, L.k(SRD_K, t*8192, KFL))
        rf.add(t, L.v(SRD_V, t*8192, VFL))
    seq = [(qf, "Q")] + [(kf, t) for t in range(16)] + [(rf, t) for t in range(16)]
    wp = WinPacer(g, seq, WIN, PACE)
    wp.fill(WIN)
    g.tick = wp
    for t in range(16):
        wp.need(kf, t)
        kf.wait(t)
        last = read_ktile(kf.slot[t], "v", KF)
        if t >= 1: max_tile(t-1)
        g.wait_lg(last)
        kf.release(t)
        s_mfmas(t, ("v", KF), ("v", T))
        if t in (0, 7): c.stamp()
    max_tile(15)
    finish_max()
    c.stamp()
    for t in range(8):
        for op in exp_ops(t): op()
    c.stamp()
    oacc = lambda j, qb: ("a", 16*j + 8 + 4*qb)
    for t in range(16):
        wp.need(rf, t)
        rf.wait(t)
        c.tile_gemm(rf.slot[t], [(lambda qb, t=t: ("a", 16*t + 4*qb), oacc)], t == 0,
                    after_perms=lambda t=t: rf.release(t), fill=exp_ops(t+8) if t < 8 else ())
        if t == 7: c.stamp()
    c.stamp()
    g.tick = None
    for qb in range(2):
        c.xlane(vL[qb], "v_add_f32")
        V(f"v_rcp_f32 v{vL[qb]}, v{vL[qb]}", [vL[qb]], [vL[qb]], kind="trans")
    k = 0
    for qb in range(2):
        for r in range(4):
            b = RING + 8*k; k += 1
            for j in range(8):
                a = oacc(j, qb)[1] + r
                V(f"v_accvgpr_read_b32 v{b+j}, a{a}", [b+j], [("a", a)])
            for j in range(8):
                V(f"v_mul_f32 v{b+j}, v{b+j}, v{vL[qb]}", [b+j], [b+j, vL[qb]])
            for p in range(4):
                V(f"v_cvt_pk_bf16_f32 v{b+p}, v{b+2*p}, v{b+2*p+1}", [b+p], [b+2*p, b+2*p+1])
            S(f"s_mov_b32 s7, {(r*2 + qb)*1024:#x}", [7])
            g.bstore(("v", b), 4, vLIN, SRD_O, "s7")
    print("attn est cycles", g.now)
    c.stamp_flush()
    g.label("ATTN_END")
    g.raw("    s_endpgm")

def gen_reduce(g):
    c = Ctx(g)
    S, V = c.S, c.V
    g.raw(".p2align 8")
    g.raw(".globl reduce_kernel")
    g.raw(".type reduce_kernel,@function")
    g.label("reduce_kernel")
    g.reset_state()
    S("s_cmp_ge_u32 s2, 256", [], [2])
    g.salu("s_cbranch_scc1 RED_END")
    g.salu("s_load_dwordx2 s[28:29], s[0:1], 80", w=R("s", 28, 2))
    g.salu("s_load_dwordx2 s[32:33], s[0:1], 96", w=R("s", 32, 2))
    V("v_lshrrev_b32 v1, 6, v0", [1], [0])
    V("v_and_b32 v0, 63, v0", [0], [0])
    V("v_readfirstlane_b32 s3, v1", [("s", 3)], [1], kind="rfl")
    S("s_lshr_b32 s4, s2, 3", [4], [2])
    S("s_and_b32 s5, s2, 7", [5], [2])
    S("s_lshl_b32 s35, s5, 2", [35], [5])
    S("s_add_u32 s35, s35, s3", [35], [35, 3])
    S("s_lshl_b32 s6, s4, 19", [6], [4])
    S("s_lshl_b32 s7, s35, 11", [7], [35])
    S("s_add_u32 s6, s6, s7", [6], [6, 7])
    S(f"s_add_u32 s6, s6, {WS_P:#x}", [6], [6])
    S("s_sub_u32 s7, 0x80000, s7", [7], [7])
    g.emit(Ins("s_waitcnt lgkmcnt(0)", "wait"))
    c.srd(40, 32, 6, "s7")
    S("s_and_b32 s6, s4, 15", [6], [4])
    S("s_lshl_b32 s6, s6, 16", [6], [6])
    S("s_lshr_b32 s7, s4, 4", [7], [4])
    S("s_lshl_b32 s7, s7, 10", [7], [7])
    S("s_add_u32 s6, s6, s7", [6], [6, 7])
    S("s_lshr_b32 s7, s5, 1", [7], [5])
    S("s_lshl_b32 s7, s7, 8", [7], [7])
    S("s_add_u32 s6, s6, s7", [6], [6, 7])
    S("s_and_b32 s7, s5, 1", [7], [5])
    S("s_lshl_b32 s7, s7, 15", [7], [7])
    S("s_add_u32 s6, s6, s7", [6], [6, 7])
    S("s_lshl_b32 s7, s3, 4", [7], [3])
    S("s_add_u32 s6, s6, s7", [6], [6, 7])
    S("s_sub_u32 s7, 0x100000, s6", [7], [6])
    c.srd(44, 28, 6, "s7")
    V("v_lshlrev_b32 v2, 4, v0", [2], [0])
    V("v_and_b32 v3, 15, v0", [3], [0])
    V("v_lshrrev_b32 v4, 4, v0", [4], [0])
    V("v_lshlrev_b32 v3, 11, v3", [3], [3])
    V("v_lshl_add_u32 v3, v4, 6, v3", [3], [4, 3])
    toks = []
    for p in range(8):
        S(f"s_mov_b32 s36, {p*65536:#x}", [36])
        g.bload(("v", 8 + 8*p), 4, 2, 40, "s36")
        toks.append(g.bload(("v", 12 + 8*p), 4, 2, 40, "s36", imm=1024))
    g.wait_vm(toks[0])
    for p in range(1, 8):
        g.wait_vm(toks[p])
        for e in range(8):
            V(f"v_add_f32 v{8+e}, v{8+e}, v{8+8*p+e}", [8+e], [8+e, 8+8*p+e])
    for p in range(4):
        V(f"v_cvt_pk_bf16_f32 v{4+p}, v{8+2*p}, v{9+2*p}", [4+p], [8+2*p, 9+2*p])
    g.bstore(("v", 4), 4, 3, 44, "0")
    g.label("RED_END")
    g.raw("    s_endpgm")

g = Gen()
g.raw(HEADER.rstrip())
LD = 16 * KSLOT
g.raw(f"; @launch kernel=qproj_kernel grid=(256,1,1) block=(256,1,1) lds={LD}")
g.raw(f"; @launch kernel=attn_kernel grid=(256,1,1) block=(256,1,1) lds={LD}")
g.raw(f"; @launch kernel=oproj_kernel grid=(256,1,1) block=(256,1,1) lds={LD}")
g.raw("; @launch kernel=reduce_kernel grid=(256,1,1) block=(256,1,1) lds=0")
g.raw('.amdgcn_target "amdgcn-amd-amdhsa--gfx950"')
g.raw(".text")
gen_gemm(g, "q")
gen_attn(g)
gen_gemm(g, "o")
gen_reduce(g)
g.raw('.section .rodata,"a"')
g.raw(kd("qproj_kernel", 448, 256))
g.raw(kd("attn_kernel", 512, 256))
g.raw(kd("oproj_kernel", 448, 256))
g.raw(kd("reduce_kernel", 72, 72))
open(OUT, "w").write(g.text())
print("wrote", OUT, len(g.text()), "bytes")
```

```python
import sys, math, struct
from asmgen import *

NAME = "concat_heads__gqa_block_cached__mha_block_cached__near_ridge"
def f32bits(x):
    return struct.unpack("<I", struct.pack("<f", x))[0]
SCALE_LOG2E = f32bits(math.log2(math.e) / math.sqrt(128.0))
HEADER = open(f"cdna_kernels/{NAME}.s.ref").read().split("; Override launch geometry")[0]
KSLOT = 8 * 1040

S_WV, S_XCD, S_J = 3, 4, 5
S_LO, S_HI = 38, 39
S_STAMP = 88
S_C, S_OFF, S_KB, S_T, S_ROT = 96, 97, 98, 100, 99
vLIN, vKD, vKR, vWQ, vWO = 0, 1, 2, 3, 4
TMP = 10
STV = 31
T = 32
RING = 64
vM = [TMP + 16, TMP + 17]
vL = [TMP + 18, TMP + 19]

class Ctx:
    def __init__(self, g, stamps=False, stamp_base=64 << 20):
        self.g, self.stamps, self.stamp_base = g, stamps, stamp_base
        self.nstamp = 0
        self.nlabel = 0
    def S(self, t, w=(), r=()):
        return self.g.salu(t, w=[("s", x) if isinstance(x, int) else x for x in w], r=[("s", x) for x in r])
    def V(self, t, w=(), r=(), kind="valu"):
        cv = lambda x: ("v", x) if isinstance(x, int) else x
        return self.g.valu(t, w=[cv(x) for x in w], r=[cv(x) for x in r], kind=kind)
    def srd(self, d, plo, soff, nrec):
        S, g = self.S, self.g
        save, g.in_tick = g.in_tick, True
        S(f"s_add_u32 s{d}, s{plo}, s{soff}", [d], [plo, soff])
        S(f"s_addc_u32 s{d+1}, s{plo+1}, 0", [d+1], [plo+1])
        S(f"s_and_b32 s{d+1}, s{d+1}, 0xffff", [d+1], [d+1])
        S(f"s_mov_b32 s{d+2}, {nrec}", [d+2])
        S(f"s_mov_b32 s{d+3}, 0x20000", [d+3])
        g.in_tick = save
    def lgk0(self):
        self.g.emit(Ins("s_waitcnt lgkmcnt(0)", "wait")); self.g.lg_done = self.g.lg_issued
    def barrier(self):
        self.lgk0()
        self.g.salu("s_barrier")
    def stamp(self):
        if not self.stamps: return
        g = self.g
        g.salu(f"s_memrealtime s[{S_STAMP}:{S_STAMP+1}]", w=R("s", S_STAMP, 2))
        self.lgk0()
        g.valu(f"v_writelane_b32 v{STV}, s{S_STAMP}, {self.nstamp}", w=[("v", STV)], r=[("s", S_STAMP), ("v", STV)])
        self.nstamp += 1
    def stamp_flush(self):
        if not self.stamps: return
        g, S, V = self.g, self.S, self.V
        g.tick = None
        g.wait_all()
        self.stamp()
        S("s_lshl_b32 s7, s2, 2", [7], [2])
        S(f"s_add_u32 s7, s7, s{S_WV}", [7], [7, S_WV])
        S("s_lshl_b32 s6, s7, 8", [6], [7])
        S(f"s_add_u32 s6, s6, {self.stamp_base:#x}", [6], [6])
        self.srd(88, 32, 6, 256)
        V(f"v_lshrrev_b32 v{TMP}, 2, v{vLIN}", [TMP], [vLIN])
        g.bstore(("v", STV), 1, TMP, 88, "0")
        g.wait_all()
        if getattr(self, "dbgwg", None) is not None:
            S(f"s_lshl_b32 s6, s2, 2", [6], [2])
            S(f"s_add_u32 s6, s6, s{S_WV}", [6], [6, S_WV])
            S(f"s_cmp_eq_u32 s6, {self.dbgwg*4}", [], [6])
            self.nlabel += 1
            g.salu(f"s_cbranch_scc0 NODBG{self.nlabel}")
            S("s_mov_b32 s6, 0", [6])
            self.srd(88, 30, 6, 64)
            g.raw("    s_nop 4")
            g.raw(f"    v_readlane_b32 s6, v{STV}, 0")
            g.raw("    s_nop 4")
            g.raw(f"    v_subrev_u32 v{STV}, s6, v{STV}")
            g.raw(f"    buffer_store_dword v{STV}, v{TMP}, s[88:91], 0 offen")
            g.raw("    s_waitcnt vmcnt(0)")
            g.label(f"NODBG{self.nlabel}")
    def transpose_j(self, Tb, raw, j):
        w = j >> 1
        sel = S_HI if (j & 1) else S_LO
        for p in range(4):
            a = raw + (2*p) * 4 + w
            b = raw + (2*p+1) * 4 + w
            self.V(f"v_perm_b32 v{Tb+p}, v{b}, v{a}, s{sel}", [Tb+p], [a, b, ("s", sel)])
    def tile_gemm(self, raw, pairs, first, after_perms=None, fill=()):
        g = self.g
        fill = list(fill)
        per = (len(fill) + 7) // 8
        for j in range(9):
            if j < 8:
                self.transpose_j(T + 4*j, raw, j)
            if j == 7 and after_perms: after_perms()
            if j >= 1:
                for bop, acc in pairs:
                    for qb in range(2):
                        d = acc(j-1, qb)
                        g.mfma16(d, ("v", T + 4*(j-1)), bop(qb), None if first else d)
                for op in fill[(j-1)*per:j*per]: op()
    def xlane(self, reg, op):
        V = self.V
        t0 = TMP
        V(f"v_mov_b32 v{t0}, v{reg}", [t0], [reg])
        V(f"v_permlane32_swap_b32 v{reg}, v{t0}", [reg, t0], [reg, t0], kind="perml")
        V(f"{op} v{reg}, v{reg}, v{t0}", [reg], [reg, t0])
        V(f"v_mov_b32 v{t0}, v{reg}", [t0], [reg])
        V(f"v_permlane16_swap_b32 v{reg}, v{t0}", [reg, t0], [reg, t0], kind="perml")
        V(f"{op} v{reg}, v{reg}, v{t0}", [reg], [reg, t0])
    def prologue(self, name, endlabel, lds_wave_bytes):
        g, S, V = self.g, self.S, self.V
        g.raw(".p2align 8")
        g.raw(f".globl {name}")
        g.raw(f".type {name},@function")
        g.label(name)
        g.reset_state()
        S("s_cmp_ge_u32 s2, 256", [], [2])
        g.salu(f"s_cbranch_scc1 {endlabel}")
        g.salu("s_load_dwordx16 s[8:23], s[0:1], 0", w=R("s", 8, 16))
        g.salu("s_load_dwordx8 s[24:31], s[0:1], 64", w=R("s", 24, 8))
        g.salu("s_load_dwordx2 s[32:33], s[0:1], 96", w=R("s", 32, 2))
        LN, I_, G_, X_, Y_ = TMP, TMP+1, TMP+2, TMP+3, TMP+4
        V("v_lshrrev_b32 v1, 6, v0", [1], [0])
        V(f"v_and_b32 v{LN}, 63, v0", [LN], [0])
        V(f"v_readfirstlane_b32 s{S_WV}, v1", [("s", S_WV)], [1], kind="rfl")
        S(f"s_and_b32 s{S_XCD}, s2, 7", [S_XCD], [2])
        S(f"s_lshr_b32 s{S_J}, s2, 3", [S_J], [2])
        S(f"s_mul_i32 s{S_KB}, s{S_WV}, {lds_wave_bytes}", [S_KB], [S_WV])
        S(f"s_mov_b32 s{S_LO}, 0x05040100", [S_LO])
        S(f"s_mov_b32 s{S_HI}, 0x07060302", [S_HI])
        S(f"s_mov_b32 s{S_C}, {SCALE_LOG2E:#x}", [S_C])
        V(f"v_and_b32 v{I_}, 15, v{LN}", [I_], [LN])
        V(f"v_lshrrev_b32 v{G_}, 4, v{LN}", [G_], [LN])
        V(f"v_lshlrev_b32 v{vLIN}, 4, v{LN}", [vLIN], [LN])
        V(f"v_lshlrev_b32 v{X_}, 2, v{G_}", [X_], [G_])
        V(f"v_xor_b32 v{X_}, v{X_}, v{I_}", [X_], [X_, I_])
        V(f"v_lshlrev_b32 v{X_}, 4, v{X_}", [X_], [X_])
        V(f"v_lshl_add_u32 v{vKD}, v{G_}, 10, v{X_}", [vKD], [G_, X_])
        V(f"v_lshrrev_b32 v{X_}, 2, v{I_}", [X_], [I_])
        V(f"v_mul_u32_u24 v{X_}, 1040, v{X_}", [X_], [X_])
        V(f"v_and_b32 v{Y_}, 3, v{I_}", [Y_], [I_])
        V(f"v_lshl_add_u32 v{X_}, v{Y_}, 8, v{X_}", [X_], [Y_, X_])
        V(f"v_xor_b32 v{Y_}, v{Y_}, v{G_}", [Y_], [Y_, G_])
        V(f"v_lshl_add_u32 v{X_}, v{Y_}, 6, v{X_}", [X_], [Y_, X_])
        V(f"v_add_u32 v{vKR}, s{S_KB}, v{X_}", [vKR], [("s", S_KB), X_])
        V(f"v_lshlrev_b32 v{X_}, 4, v{I_}", [X_], [I_])
        V(f"v_lshl_add_u32 v{vWQ}, v{G_}, 18, v{X_}", [vWQ], [G_, X_])
        V(f"v_lshl_add_u32 v{vWO}, v{G_}, 15, v{X_}", [vWO], [G_, X_])
        if self.stamps: V(f"v_mov_b32 v{STV}, 0", [STV])
        self.lgk0()
        self.stamp()

class Fifo:
    def __init__(self, g, slots):
        self.g, self.slots = g, slots
        self.order, self.next, self.sub, self.busy, self.tok, self.slot = [], 0, 0, {}, {}, {}
    def add(self, name, fn):
        slot = self.slots[len(self.order) % len(self.slots)]
        self.order.append((name, slot, fn(slot))); self.slot[name] = slot
    def can(self):
        if self.next >= len(self.order): return False
        name, slot, th = self.order[self.next]
        if self.sub == 0 and slot in self.busy: return False
        return self.g.outstanding() < 62
    def issue1(self):
        name, slot, th = self.order[self.next]
        if self.sub == 0: self.busy[slot] = name
        save, self.g.in_tick = self.g.in_tick, True
        t = th[self.sub]()
        self.g.in_tick = save
        self.sub += 1
        if self.sub == len(th):
            self.tok[name] = t; self.next += 1; self.sub = 0
    def wait(self, name):
        assert name in self.tok, name
        self.g.wait_vm(self.tok[name])
    def release(self, name):
        del self.busy[self.slot[name]]

class WinPacer:
    def __init__(self, g, seq, win, pace):
        self.g, self.seq, self.i, self.win, self.pace, self.last = g, seq, 0, win, pace, -1000
    def cur(self):
        while self.i < len(self.seq) and self.seq[self.i][1] in self.seq[self.i][0].tok: self.i += 1
        return self.seq[self.i][0] if self.i < len(self.seq) else None
    def step(self):
        g, f = self.g, self.cur()
        if f is None: return False
        name, slot, th = f.order[f.next]
        if f.sub == 0 and slot in f.busy: return False
        save, g.in_tick = g.in_tick, True
        if g.outstanding() >= self.win: g.wait_vm(g.vm_issued - self.win)
        g.in_tick = save
        f.issue1()
        self.last = g.now
        return True
    def fill(self, n=10**9):
        while n > 0 and self.step(): n -= 1
    def need(self, f, name):
        while name not in f.tok:
            assert self.step(), f"{name} cannot be issued"
    def __call__(self):
        if self.g.now - self.last >= self.pace: self.step()

class PrioPacer(WinPacer):
    def pick(self):
        for f, name in self.seq:
            if f.sub and f.order[f.next][0] == name: return f
        blocked = set()
        for f, name in self.seq:
            if name in f.tok or id(f) in blocked: continue
            nm, slot, th = f.order[f.next]
            assert nm == name
            if slot in f.busy: blocked.add(id(f)); continue
            return f
        return None
    def step(self):
        g, f = self.g, self.pick()
        if f is None: return False
        save, g.in_tick = g.in_tick, True
        if g.outstanding() >= self.win: g.wait_vm(g.vm_issued - self.win)
        g.in_tick = save
        f.issue1()
        self.last = g.now
        return True
    def lead(self, f, name, n):
        self.need(f, name)
        while self.g.vm_issued - 1 - f.tok[name] < n and self.step(): pass

class Loads:
    def __init__(self, c):
        self.c = c
    def soff(self, off, rot):
        if rot: self.c.S(f"s_xor_b32 s{S_OFF}, s{S_ROT}, {off:#x}", [S_OFF], [S_ROT])
        else: self.c.S(f"s_mov_b32 s{S_OFF}, {off:#x}", [S_OFF])
    def dma(self, slot, idx, srd, off, imm, flags="", rot=False):
        c, g = self.c, self.c.g
        m0 = slot*KSLOT + idx*1040 - imm
        assert m0 >= 0
        c.S(f"s_add_u32 m0, s{S_KB}, {m0:#x}", [("m0", 0)], [S_KB])
        self.soff(off, rot)
        t = f"buffer_load_dwordx4 v{vKD}, s[{srd}:{srd+3}], s{S_OFF} offen"
        if imm: t += f" offset:{imm}"
        if flags: t += " " + flags
        t += " lds"
        return g.emit(Ins(t, "ldsdma", r=[("v", vKD), ("s", S_OFF)] + R("s", srd, 4)))
    def ld(self, dst, voff, srd, off, flags="", kind="v", rot=False):
        self.soff(off, rot)
        return self.c.g.bload((kind, dst), 4, voff, srd, f"s{S_OFF}", flags=flags)
    def k(self, srd, off, flags="", rot=False):
        return lambda slot: [(lambda kb=kb, jj=jj: self.dma(slot, 4*kb + jj, srd, off + kb*4096, jj*256, flags, rot)) for kb in range(2) for jj in range(4)]
    def x(self, srd, off):
        return lambda slot: [(lambda idx=idx: self.dma(slot, idx, srd, off + idx*4096, 0)) for idx in range(8)]
    def v(self, srd, off, flags="", kind="v", rot=False):
        return lambda slot: [(lambda jj=jj: self.ld(slot + 4*jj, vLIN, srd, off + jj*1024, flags, kind, rot)) for jj in range(8)]
    def w(self, srd, row0, coloff=0):
        return lambda slot: [(lambda jj=jj: self.ld(slot + 4*jj, vWQ, srd, (row0 + jj)*8192 + coloff)) for jj in range(8)]
    def wo(self, srd, row0, coloff=0):
        return lambda slot: [(lambda jj=jj: self.ld(slot + 4*jj, vWO, srd, (row0 + jj)*1024 + coloff)) for jj in range(8)]

def attn_helpers(c):
    V, g = c.V, c.g
    def read_ktile(slot, kind, dst):
        for kb in range(2):
            for s in range(4):
                last = g.ds_read(dst + 16*kb + 4*s, 4, vKR, off=slot*KSLOT + kb*4160 + s*16, kind=kind)
        return last
    def s_mfmas(t, kfr, qfr):
        for s in range(4):
            for kb in range(2):
                for qb in range(2):
                    d = ("a", 16*t + 8*kb + 4*qb)
                    g.mfma16(d, (kfr[0], kfr[1] + 16*kb + 4*s), (qfr[0], qfr[1] + 8*s + 4*qb), None if s == 0 else d)
    def max_tile(t):
        for qb in range(2):
            for kb in range(2):
                for r in range(4):
                    a, x = 16*t + 8*kb + 4*qb + r, TMP + 8*qb + 4*kb + r
                    V(f"v_accvgpr_read_b32 v{x}, a{a}", [x], [("a", a)])
        for qb in range(2):
            b, m = TMP + 8*qb, vM[qb]
            if t == 0:
                V(f"v_max3_f32 v{m}, v{b}, v{b+1}, v{b+2}", [m], [b, b+1, b+2])
                V(f"v_max3_f32 v{m}, v{m}, v{b+3}, v{b+4}", [m], [m, b+3, b+4])
                V(f"v_max3_f32 v{m}, v{m}, v{b+5}, v{b+6}", [m], [m, b+5, b+6])
                V(f"v_max_f32 v{m}, v{m}, v{b+7}", [m], [m, b+7])
            else:
                for p in range(4):
                    V(f"v_max3_f32 v{m}, v{m}, v{b+2*p}, v{b+2*p+1}", [m], [m, b+2*p, b+2*p+1])
    def finish_max():
        for qb in range(2):
            c.xlane(vM[qb], "v_max_f32")
            V(f"v_mul_f32 v{vM[qb]}, s{S_C}, v{vM[qb]}", [vM[qb]], [vM[qb], ("s", S_C)])
            V(f"v_mov_b32 v{vL[qb]}, 0", [vL[qb]])
    def exp_ops(t):
        ops = []
        for qb in range(2):
            for kb in range(2):
                for r in range(4):
                    a, x = 16*t + 8*kb + 4*qb + r, TMP + 8*qb + 4*kb + r
                    ops.append(lambda a=a, x=x: V(f"v_accvgpr_read_b32 v{x}, a{a}", [x], [("a", a)]))
        for e in range(16):
            ops.append(lambda x=TMP + e, m=vM[e >> 3]: V(f"v_fma_f32 v{x}, v{x}, s{S_C}, -v{m}", [x], [x, ("s", S_C), m]))
        for e in range(16):
            ops.append(lambda x=TMP + e: V(f"v_exp_f32 v{x}, v{x}", [x], [x], kind="trans"))
        for e in range(16):
            ops.append(lambda x=TMP + e, l=vL[e >> 3]: V(f"v_add_f32 v{l}, v{l}, v{x}", [l], [l, x]))
        for p in range(8):
            ops.append(lambda x=TMP + 2*p: V(f"v_cvt_pk_bf16_f32 v{x}, v{x}, v{x+1}", [x], [x, x+1]))
        for p in range(8):
            ops.append(lambda x=TMP + 2*p, a=16*t + p: V(f"v_accvgpr_write_b32 a{a}, v{x}", [("a", a)], [x]))
        return ops
    return read_ktile, s_mfmas, max_tile, finish_max, exp_ops

def kd(name, vgpr, accum, sgpr=102):
    return f""".p2align 6
.amdhsa_kernel {name}
  .amdhsa_next_free_vgpr {vgpr}
  .amdhsa_next_free_sgpr {sgpr}
  .amdhsa_accum_offset {accum}
  .amdhsa_group_segment_fixed_size 0
  .amdhsa_kernarg_size 104
  .amdhsa_user_sgpr_count 2
  .amdhsa_user_sgpr_kernarg_segment_ptr 1
  .amdhsa_system_sgpr_workgroup_id_x 1
.end_amdhsa_kernel
"""
```

```python
from common import *
import copy
OUT = sys.argv[1] if len(sys.argv) > 1 else f"cdna_kernels/{NAME}.s"
OPTS = dict(a.split("=") for a in sys.argv[2:])
FLA = OPTS.get("a", "").replace("+", " ")
FLB = OPTS.get("b", "nt").replace("+", " ").replace("none", "")
STAMPS = OPTS.get("stamps", "0") == "1"
WIN = int(OPTS.get("win", "32"))
PACE = int(OPTS.get("pace", "24"))
QPACE = int(OPTS.get("qpace", "190"))
SPIN_MAX = int(OPTS.get("spin", "20000"))
NSPL = int(OPTS.get("nspl", "1"))
NKS = 4
WB = NKS * KSLOT
WS_O, WS_P, WS_F = 8 << 20, 16 << 20, 40 << 20
F_O, F_P = 0, 32768
L_END = 4 * WB
SC = "sc1"
KN = f"{NAME}_kernel"
S_AB, S_B, S_H, S_HL = 34, 35, 36, 37
SRD_W, SRD_X, SRD_Y, SRD_K, SRD_V, SRD_O, SRD_F, SRD_D, SRD_Z = 40, 44, 48, 52, 56, 64, 68, 72, 76
S_FO, S_FP, S_U = 80, 81, 85
vFW, vL1, vL2, vZ, vL4 = 5, 6, 7, 8, 9

g = Gen()
c = Ctx(g, stamps=STAMPS)
S, V = c.S, c.V
L = Loads(c)
read_ktile, s_mfmas, max_tile, finish_max, exp_ops = attn_helpers(c)
KEYS = ("pos", "valu_w", "trans_w", "mfma_w", "mfma_c", "store_d", "m0_w", "vm_issued", "vm_done", "lg_issued", "lg_done", "now", "mfma_free")
def snapshot(): return {k: copy.copy(getattr(g, k)) for k in KEYS}
def restore(s):
    for k, v in s.items(): setattr(g, k, copy.copy(v))
def lds_addr(off):
    return (vLIN, vL1, vL2)[off >> 16], off & 0xffff
def poll_global(srd, voff, soff, lanes, expect=1, sleep=1):
    c.nlabel += 1
    lab = f"PG{c.nlabel}"
    S(f"s_mov_b32 s{S_T}, {expect:#x}", [S_T])
    S(f"s_mov_b32 s101, {SPIN_MAX}", [101])
    if lanes < 64: S(f"s_mov_b64 exec, {(1 << lanes) - 1:#x}")
    g.raw("    s_nop 4")
    g.label(lab)
    g.raw(f"    buffer_load_dword v{TMP}, v{voff}, s[{srd}:{srd+3}], {soff} offen sc1")
    g.raw("    s_waitcnt vmcnt(0)")
    g.raw(f"    v_cmp_ne_u32 vcc, s{S_T}, v{TMP}")
    g.raw("    s_nop 4")
    g.raw("    s_cmp_eq_u64 vcc, 0")
    g.raw(f"    s_cbranch_scc1 {lab}_done")
    g.raw(f"    s_sleep {sleep}")
    g.raw("    s_sub_u32 s101, s101, 1")
    g.raw(f"    s_cbranch_scc0 {lab}")
    g.label(lab + "_done")
    if lanes < 64: g.raw("    s_mov_b64 exec, -1")
    g.vm_done = g.vm_issued
    g.pos += 16; g.now += 1000
def flag_store(soff, val):
    S("s_mov_b64 exec, 1")
    t = g.bstore(("v", val), 1, vZ, SRD_F, f"s{soff}", flags=SC)
    S("s_mov_b64 exec, -1")
    return t
def publish(soff_reg, tok):
    g.wait_vm(tok)
    V(f"v_mov_b32 v{TMP}, 1", [TMP])
    flag_store(soff_reg, TMP)

g.raw(HEADER.rstrip())
g.raw(f"; @launch grid=(256,1,1) block=(256,1,1) lds={L_END}")
g.raw('.amdgcn_target "amdgcn-amd-amdhsa--gfx950"')
g.raw(".text")
c.prologue(KN, "K_END", WB)
S(f"s_lshr_b32 s{S_AB}, s{S_J}, 4", [S_AB], [S_J])
S(f"s_lshr_b32 s6, s{S_J}, 2", [6], [S_J])
S("s_and_b32 s6, s6, 3", [6], [6])
S("s_lshl_b32 s6, s6, 2", [6], [6])
S(f"s_add_u32 s{S_B}, s6, s{S_WV}", [S_B], [6, S_WV])
S(f"s_and_b32 s{S_HL}, s{S_J}, 3", [S_HL], [S_J])
S(f"s_lshl_b32 s7, s{S_XCD}, 2", [7], [S_XCD])
S(f"s_add_u32 s{S_H}, s{S_HL}, s7", [S_H], [S_HL, 7])
S(f"s_cmp_eq_u32 s{S_AB}, 0", [], [S_AB])
S("s_cselect_b64 s[92:93], s[8:9], s[18:19]", [92, 93], [8, 9, 18, 19])
S("s_cselect_b64 s[94:95], s[14:15], s[24:25]", [94, 95], [14, 15, 24, 25])
S("s_cselect_b64 s[20:21], s[10:11], s[20:21]", [20, 21], [10, 11, 20, 21])
S("s_cselect_b64 s[22:23], s[12:13], s[22:23]", [22, 23], [12, 13, 22, 23])
S(f"s_lshl_b32 s6, s{S_WV}, 16", [6], [S_WV])
S(f"s_lshl_b32 s7, s{S_H}, 8", [7], [S_H])
S("s_add_u32 s6, s6, s7", [6], [6, 7])
S("s_sub_u32 s7, 0x400000, s6", [7], [6])
c.srd(SRD_W, 94, 6, "s7")
S(f"s_lshl_b32 s6, s{S_B}, 15", [6], [S_B])
c.srd(SRD_X, 92, 6, 32768)
wf = Fifo(g, [RING + 32*i for i in (1, 2, 3, 4)])
bf = Fifo(g, list(range(4)))
for q in range(4):
    wf.add(q, L.w(SRD_W, 128*q))
    bf.add(q, L.x(SRD_X, q*256))
qp = WinPacer(g, [(f, q) for q in range(4) for f in (bf, wf)], 62, 30)
qp.fill(16)
V(f"v_add_u32 v{vFW}, s{S_KB}, v{vLIN}", [vFW], [("s", S_KB), vLIN])
V(f"v_add_u32 v{vL1}, 0x10000, v{vLIN}", [vL1], [vLIN])
V(f"v_add_u32 v{vL2}, 0x20000, v{vLIN}", [vL2], [vLIN])
V(f"v_mov_b32 v{vZ}, 0", [vZ])
V(f"v_lshrrev_b32 v{vL4}, 2, v{vLIN}", [vL4], [vLIN])
S(f"s_lshl_b32 s90, s{S_B}, 22", [90], [S_B])
S(f"s_lshl_b32 s7, s{S_H}, 17", [7], [S_H])
S("s_add_u32 s90, s90, s7", [90], [90, 7])
S(f"s_lshl_b32 s91, s{S_B}, 20", [91], [S_B])
S(f"s_lshl_b32 s7, s{S_XCD}, 17", [7], [S_XCD])
S("s_add_u32 s91, s91, s7", [91], [91, 7])
S(f"s_cmp_eq_u32 s{S_AB}, 0", [], [S_AB])
S("s_cselect_b32 s90, s91, s90", [90], [90, 91])
S(f"s_cselect_b32 s7, s{S_XCD}, s{S_H}", [7], [S_XCD, S_H])
S(f"s_cselect_b32 s6, s{S_HL}, 0", [6], [S_HL])
S("s_mul_i32 s7, s7, 3", [7], [7])
S(f"s_mul_i32 s91, s{S_B}, 5", [91], [S_B])
S("s_add_u32 s7, s7, s91", [7], [7, 91])
S("s_and_b32 s7, s7, 31", [7], [7])
STAG = int(OPTS.get("stag", "0"))
if STAG >= 0:
    S(f"s_lshl_b32 s6, s6, {STAG}", [6], [6])
    S("s_xor_b32 s7, s7, s6", [7], [7, 6])
S(f"s_lshl_b32 s{S_ROT}, s7, 12", [S_ROT], [7])
S(f"s_lshl_b32 s91, s{S_AB}, 4", [91], [S_AB])
S(f"s_add_u32 s91, s91, s{S_B}", [91], [91, S_B])
S("s_lshl_b32 s6, s91, 5", [6], [91])
S(f"s_add_u32 s6, s6, s{S_H}", [6], [6, S_H])
S("s_lshr_b32 s7, s6, 2", [7], [6])
S("s_lshl_b32 s7, s7, 7", [7], [7])
S(f"s_lshl_b32 s{S_FO}, s{S_HL}, 2", [S_FO], [S_HL])
S(f"s_add_u32 s{S_FO}, s{S_FO}, s7", [S_FO], [S_FO, 7])
S("s_lshl_b32 s6, s6, 13", [6], [6])
S(f"s_add_u32 s6, s6, {WS_O:#x}", [6], [6])
c.srd(SRD_O, 32, 6, 8192)
S("s_lshl_b32 s6, s91, 2", [6], [91])
S(f"s_add_u32 s6, s6, s{S_HL}", [6], [6, S_HL])
S("s_lshl_b32 s6, s6, 5", [6], [6])
S(f"s_add_u32 s6, s6, s{S_XCD}", [6], [6, S_XCD])
S("s_lshl_b32 s6, s6, 2", [6], [6])
S(f"s_add_u32 s{S_FP}, s6, {F_P}", [S_FP], [6])
S(f"s_mov_b32 s6, {WS_F:#x}", [6])
c.srd(SRD_F, 32, 6, 49152)
for r in (S_FO, S_FP): flag_store(r, vZ)
qp.fill(16)
c.srd(SRD_K, 20, 90, 131072)
c.srd(SRD_V, 22, 90, 131072)
S("s_mov_b32 s6, 0", [6])
c.srd(SRD_D, 30, 6, 256)
S(f"s_cmp_eq_u32 s{S_AB}, 0", [], [S_AB])
g.salu("s_cbranch_scc1 A_PATH")
snap = snapshot(); ns = c.nstamp
fsnap = [(f, f.next, f.sub, dict(f.busy), dict(f.tok)) for f in (wf, bf)]
KF = RING + 5*32
oacc = lambda j, qb: ("a", 128 + 8*j + 4*qb)
WO_AT = [int(x) for x in OPTS.get("woat", "9,11,13,15").split(",")]

def wo_srd(ptr):
    S(f"s_lshl_b32 s6, s{S_XCD}, 2", [6], [S_XCD])
    S(f"s_add_u32 s6, s6, s{S_WV}", [6], [6, S_WV])
    S("s_lshl_b32 s6, s6, 17", [6], [6])
    S(f"s_lshl_b32 s7, s{S_HL}, 8", [7], [S_HL])
    S("s_add_u32 s6, s6, s7", [6], [6, 7])
    S("s_sub_u32 s7, 0x400000, s6", [7], [6])
    c.srd(SRD_W, ptr, 6, "s7")
def stage_wo(raw, s):
    c.lgk0()
    for j in range(8):
        c.transpose_j(KF + 4*j, raw, j)
        g.ds_write(vFW, KF + 4*j, 4, off=(s*8 + j)*1024)

def role(fl, tag):
    is_a = tag == "A"
    for f, n, sb, b, t in fsnap: f.next, f.sub, f.busy, f.tok = n, sb, dict(b), dict(t)
    qp.i = 0
    kf = Fifo(g, list(range(NKS)))
    rf = Fifo(g, [RING + 32*i for i in range(5)])
    VL = [] if is_a else [int(x) for x in OPTS.get("vl", "13,14,15").split(",") if x]
    def v_lds(off):
        def piece(slot, jj):
            S(f"s_add_u32 m0, s{S_KB}, {slot*KSLOT + jj*1024:#x}", [("m0", 0)], [S_KB])
            L.soff(off + jj*1024, True)
            return g.emit(Ins(f"buffer_load_dwordx4 v{vLIN}, s[{SRD_V}:{SRD_V+3}], s{S_OFF} offen {fl} lds", "ldsdma",
                              r=[("v", vLIN), ("s", S_OFF)] + R("s", SRD_V, 4)))
        return lambda slot: [(lambda jj=jj: piece(slot, jj)) for jj in range(8)]
    for t in range(16): kf.add(t, L.k(SRD_K, t*8192, fl, rot=True))
    vseq = []
    for t in range(16):
        if is_a and t in WO_AT:
            s = WO_AT.index(t)
            rf.add(("wo", s), L.wo(SRD_W, 8*s)); vseq.append((rf, ("wo", s)))
        if t in VL:
            kf.add(("v", t), v_lds(t*8192)); vseq.append((kf, ("v", t)))
        else:
            rf.add(t, L.v(SRD_V, t*8192, fl, rot=True)); vseq.append((rf, t))
    for i in range(NKS): kf.busy[i] = "gemm"
    for i in (1, 2, 3, 4): rf.busy[RING + 32*i] = "gemm"
    K_ = lambda a, b: [(kf, t) for t in range(a, b)]
    nv0 = [i for i, e in enumerate(vseq) if e[1] in (8, ("v", 8), ("wo", 0))][0]
    seq = K_(0, 8) + vseq[:nv0] + K_(8, 16) + vseq[nv0:]
    wp = PrioPacer(g, seq, 62, QPACE)
    for q in range(4):
        if q: c.lgk0()
        qp.need(wf, q)
        bf.wait(q)
        xt = read_ktile(q, "a", 32*q)
        wf.wait(q)
        for j in range(8): c.transpose_j(T + 4*j, wf.slot[q], j)
        del rf.busy[wf.slot[q]]
        g.wait_lg(xt)
        for j in range(8): g.ds_write(vFW, T + 4*j, 4, off=q*KSLOT + j*1024)
        if q < 2: qp.fill(16)
        if q >= 1: wp.fill(int(OPTS.get("early", "4")))
    c.stamp()
    c.barrier()
    V(f"v_mov_b32 v{TMP}, 1", [TMP])
    S(f"s_cmp_eq_u32 s{S_WV}, 0", [], [S_WV])
    S("s_cselect_b64 exec, 1, 0")
    g.salu(f"s_cbranch_scc0 NOCERT{tag}")
    g.raw(f"    buffer_store_byte v{TMP}, v{vZ}, s[{SRD_D}:{SRD_D+3}], s2 offen sc1")
    g.label(f"NOCERT{tag}")
    S("s_mov_b64 exec, -1")
    if is_a: wo_srd(16)
    acc = lambda j, qb: ("a", 128 + 8*j + 4*qb)
    NB, FB, AHEAD = 16, 192, 12
    ftok = {}
    def fread(n):
        q, s, j = n >> 5, (n >> 3) & 3, n & 7
        a, o = lds_addr(s*WB + q*KSLOT + j*1024)
        ftok[n] = g.ds_read(FB + 4*(n % NB), 4, a, off=o, kind="a")
    for n in range(AHEAD): fread(n)
    g.tick = wp
    for n in range(128):
        q, s, j = n >> 5, (n >> 3) & 3, n & 7
        g.wait_lg(ftok[n])
        for qb in range(2):
            d = acc(j, qb)
            g.mfma16(d, ("a", FB + 4*(n % NB)), ("a", 32*q + 16*qb + 4*s), None if n < 8 else d)
        if n + AHEAD < 128: fread(n + AHEAD)
    g.tick = None
    c.barrier()
    for i in range(NKS): del kf.busy[i]
    LEADL = int(OPTS.get("leada" if is_a else "leadb", "24" if is_a else "16"))
    wp.win, wp.pace = 62, int(OPTS.get("pacea" if is_a else "paceb", "60" if is_a else "190"))
    g.tick = wp
    c.stamp()
    QF = 192
    for qb in range(2):
        for r in range(4):
            for j in range(8):
                a = acc(j, qb)[1] + r
                V(f"v_accvgpr_read_b32 v{TMP+j}, a{a}", [TMP+j], [("a", a)])
            for p in range(4):
                V(f"v_cvt_pk_bf16_f32 v{TMP+8+p}, v{TMP+2*p}, v{TMP+2*p+1}", [TMP+8+p], [TMP+2*p, TMP+2*p+1])
            for p in range(4):
                d = QF + 8*r + 4*qb + p
                V(f"v_accvgpr_write_b32 a{d}, v{TMP+8+p}", [("a", d)], [TMP+8+p])
    for ch in range(2):
        KB2 = (KF, T)
        if ch == 1:
            for qb in range(2): V(f"v_accvgpr_write_b32 a{224+qb}, v{vM[qb]}", [("a", 224+qb)], [vM[qb]])
        wp.lead(kf, 8*ch, LEADL)
        kf.wait(8*ch)
        last = read_ktile(kf.slot[8*ch], "v", KB2[0])
        for tt in range(8):
            t = 8*ch + tt
            g.wait_lg(last)
            kf.release(t)
            s_mfmas(tt, ("v", KB2[tt & 1]), ("a", QF))
            if tt < 7:
                wp.lead(kf, t + 1, LEADL)
                kf.wait(t + 1)
                last = read_ktile(kf.slot[t + 1], "v", KB2[(tt + 1) & 1])
            if tt >= 1: max_tile(tt-1)
        max_tile(7)
        if ch == 0:
            finish_max()
        else:
            for qb in range(2):
                c.xlane(vM[qb], "v_max_f32")
                mo, al = TMP + 2, TMP + 4 + qb
                V(f"v_mul_f32 v{vM[qb]}, s{S_C}, v{vM[qb]}", [vM[qb]], [vM[qb], ("s", S_C)])
                V(f"v_accvgpr_read_b32 v{mo}, a{224+qb}", [mo], [("a", 224+qb)])
                V(f"v_max_f32 v{vM[qb]}, v{vM[qb]}, v{mo}", [vM[qb]], [vM[qb], mo])
                V(f"v_sub_f32 v{al}, v{mo}, v{vM[qb]}", [al], [mo, vM[qb]])
                V(f"v_exp_f32 v{al}, v{al}", [al], [al], kind="trans")
            for qb in range(2):
                V(f"v_mul_f32 v{vL[qb]}, v{vL[qb]}, v{TMP+4+qb}", [vL[qb]], [vL[qb], TMP+4+qb])
            for j in range(8):
                for e in range(8):
                    V(f"v_accvgpr_read_b32 v{TMP+8+e}, a{128 + 8*j + e}", [TMP+8+e], [("a", 128 + 8*j + e)])
                for e in range(8):
                    V(f"v_mul_f32 v{TMP+8+e}, v{TMP+8+e}, v{TMP+4+(e>>2)}", [TMP+8+e], [TMP+8+e, TMP+4+(e>>2)])
                for e in range(8):
                    V(f"v_accvgpr_write_b32 a{128 + 8*j + e}, v{TMP+8+e}", [("a", 128 + 8*j + e)], [TMP+8+e])
        c.stamp()
        if is_a and ch == int(OPTS.get("touch", "1")):
            save, g.in_tick = g.in_tick, True
            S(f"s_lshl_b32 s6, s{S_XCD}, 19", [6], [S_XCD])
            S(f"s_lshl_b32 s7, s{S_B}, 15", [7], [S_B])
            S("s_add_u32 s6, s6, s7", [6], [6, 7])
            S(f"s_lshl_b32 s7, s{S_HL}, 8", [7], [S_HL])
            S("s_add_u32 s6, s6, s7", [6], [6, 7])
            S("s_sub_u32 s7, 0x400000, s6", [7], [6])
            c.srd(SRD_Z, 26, 6, "s7")
            V(f"v_lshrrev_b32 v{TMP}, 5, v{vLIN}", [TMP], [vLIN])
            V(f"v_lshlrev_b32 v{TMP}, 10, v{TMP}", [TMP], [TMP])
            V(f"v_and_b32 v{TMP+1}, 16, v{vLIN}", [TMP+1], [vLIN])
            V(f"v_lshl_add_u32 v{TMP}, v{TMP+1}, 3, v{TMP}", [TMP], [TMP+1, TMP])
            while g.outstanding() >= 61: g.wait_vm(g.vm_done)
            g.bload(("v", 30), 1, TMP, SRD_Z, "0")
            g.in_tick = save
        for op in exp_ops(0): op()
        for f, nm in (vseq[:nv0] if ch == 0 else vseq[nv0:]):
            wp.lead(f, nm, LEADL)
            f.wait(nm)
            if f is kf:
                tt = nm[1] & 7
                for jj in range(8): last = g.ds_read(KF + 4*jj, 4, vFW, off=kf.slot[nm]*KSLOT + jj*1024)
                g.wait_lg(last)
                kf.release(nm)
                c.tile_gemm(KF, [(lambda qb, tt=tt: ("a", 16*tt + 4*qb), oacc)], False, fill=exp_ops(tt+1) if tt < 7 else ())
            elif isinstance(nm, tuple):
                stage_wo(rf.slot[nm], nm[1])
                rf.release(nm)
            else:
                tt = nm & 7
                c.tile_gemm(rf.slot[nm], [(lambda qb, tt=tt: ("a", 16*tt + 4*qb), oacc)], nm == 0,
                            after_perms=lambda nm=nm: rf.release(nm), fill=exp_ops(tt+1) if tt < 7 else ())
        if ch == 0: c.stamp()
    g.tick = None
    c.stamp()
    for qb in range(2):
        c.xlane(vL[qb], "v_add_f32")
        V(f"v_rcp_f32 v{vL[qb]}, v{vL[qb]}", [vL[qb]], [vL[qb]], kind="trans")
    k = 0
    for qb in range(2):
        for r in range(4):
            b = RING + 8*k; k += 1
            for j in range(8):
                a = oacc(j, qb)[1] + r
                V(f"v_accvgpr_read_b32 v{b+j}, a{a}", [b+j], [("a", a)])
            for j in range(8):
                V(f"v_mul_f32 v{b+j}, v{b+j}, v{vL[qb]}", [b+j], [b+j, vL[qb]])
            for p in range(4):
                V(f"v_cvt_pk_bf16_f32 v{b+p}, v{b+2*p}, v{b+2*p+1}", [b+p], [b+2*p, b+2*p+1])
            S(f"s_mov_b32 s7, {(r*2 + qb)*1024:#x}", [7])
            otk = g.bstore(("v", b), 4, vLIN, SRD_O, "s7", flags=SC)
    if is_a:
        publish(S_FO, otk)
        c.stamp()
    else:
        wo_srd(26)
        WR = RING + 64
        raw = lambda s: (WR + 32*s) if s < 3 else T
        th = [t for s in range(4) for t in L.wo(SRD_W, 8*s)(raw(s))]
        NPRE = int(OPTS.get("wpre", "8"))
        toks = [t() for t in th[:NPRE]]
        publish(S_FO, otk)
        c.stamp()
        toks += [t() for t in th[NPRE:]]
        for s in range(4):
            g.wait_vm(toks[8*s + 7])
            stage_wo(raw(s), s)
        c.stamp()
    poll_global(SRD_D, vL4, "0", 64, 0x01010101)

def oproj(ab, nspl):
    S(f"s_add_u32 s6, s{S_B}, {16*ab}", [6], [S_B])
    S("s_lshl_b32 s6, s6, 3", [6], [6])
    S(f"s_add_u32 s6, s6, s{S_XCD}", [6], [6, S_XCD])
    S(f"s_lshl_b32 s{S_U}, s6, 7", [S_U], [6])
    S("s_lshl_b32 s7, s6, 15", [7], [6])
    S(f"s_add_u32 s7, s7, {WS_O:#x}", [7], [7])
    c.srd(SRD_X, 32, 7, 32768)
    S("s_lshl_b32 s6, s6, 2", [6], [6])
    S(f"s_add_u32 s6, s6, s{S_HL}", [6], [6, S_HL])
    S("s_lshl_b32 s6, s6, 14", [6], [6])
    S(f"s_add_u32 s6, s6, {WS_P:#x}", [6], [6])
    c.srd(SRD_Y, 32, 6, 16384)
    c.barrier()
    NV, NA = 56, 16
    def frag_reg(n):
        if n < NV: return ("v", T + 4*n)
        if n < NV + NA: return ("a", 192 + 4*(n - NV))
        return ("v", T + 4*(n - NV - NA))
    ftok = {}
    def fread(n):
        kq, rest = n >> 5, n & 31
        a, o = lds_addr(kq*WB + rest*1024)
        kd_, base = frag_reg(n)
        ftok[n] = g.ds_read(base, 4, a, off=o, kind=kd_)
    for n in range(NV + NA): fread(n)
    acc = lambda j, qb: ("a", 128 + 8*j + 4*qb)
    hp = 4 // nspl
    for grp in range(nspl):
        poll_global(SRD_F, vL4, f"s{S_U}", hp)
        if grp + 1 < nspl: S(f"s_add_u32 s{S_U}, s{S_U}, {4*hp}", [S_U], [S_U])
        if grp == nspl - 1: c.stamp()
        otok = {f: L.ld(4*f, vLIN, SRD_X, f*1024, flags=SC, kind="a") for f in range(8*hp*grp, 8*hp*(grp+1))}
        if grp == 0: c.lgk0()
        for n in range(32*hp*grp, 32*hp*(grp+1)):
            ks, j = n >> 3, n & 7
            if j == 0: g.wait_vm(otok[2*ks + 1])
            g.wait_lg(ftok[n])
            for qb in range(2):
                d = acc(j, qb)
                g.mfma16(d, frag_reg(n), ("a", 8*ks + 4*qb), None if ks == 0 else d)
            m = n + NV + NA - 2
            if NV + NA <= m < 128: fread(m)
    c.stamp()
    k = 0
    for qb in range(2):
        for r in range(4):
            b = RING + 8*k; k += 1
            for j in range(8):
                a = acc(j, qb)[1] + r
                V(f"v_accvgpr_read_b32 v{b+j}, a{a}", [b+j], [("a", a)])
            S(f"s_mov_b32 s7, {(qb*4 + r)*2048:#x}", [7])
            g.bstore(("v", b), 4, vLIN, SRD_Y, "s7", flags=SC)
            ptok = g.bstore(("v", b+4), 4, vLIN, SRD_Y, "s7", imm=1024, flags=SC)
    return ptok

def reduce_setup(ab):
    S("s_lshr_b32 s90, s2, 3", [90], [2])
    if ab == 1: S("s_add_u32 s90, s90, 16", [90], [90])
    S("s_and_b32 s87, s2, 7", [87], [2])
    S("s_lshl_b32 s6, s90, 19", [6], [90])
    S("s_lshl_b32 s7, s87, 2", [7], [87])
    S(f"s_add_u32 s7, s7, s{S_WV}", [7], [7, S_WV])
    S("s_lshl_b32 s7, s7, 11", [7], [7])
    S("s_add_u32 s6, s6, s7", [6], [6, 7])
    S(f"s_add_u32 s6, s6, {WS_P:#x}", [6], [6])
    S("s_sub_u32 s7, 0x80000, s7", [7], [7])
    c.srd(SRD_X, 32, 6, "s7")
    S("s_lshl_b32 s6, s90, 2", [6], [90])
    S("s_lshr_b32 s7, s87, 1", [7], [87])
    S("s_add_u32 s6, s6, s7", [6], [6, 7])
    S("s_lshl_b32 s6, s6, 7", [6], [6])
    S(f"s_add_u32 s{S_U}, s6, {F_P}", [S_U], [6])
    S("s_and_b32 s6, s90, 15", [6], [90])
    S("s_lshl_b32 s6, s6, 16", [6], [6])
    S("s_lshr_b32 s7, s90, 4", [7], [90])
    S("s_lshl_b32 s7, s7, 10", [7], [7])
    S("s_add_u32 s6, s6, s7", [6], [6, 7])
    S("s_lshr_b32 s7, s87, 1", [7], [87])
    S("s_lshl_b32 s7, s7, 8", [7], [7])
    S("s_add_u32 s6, s6, s7", [6], [6, 7])
    S("s_and_b32 s7, s87, 1", [7], [87])
    S("s_lshl_b32 s7, s7, 15", [7], [7])
    S("s_add_u32 s6, s6, s7", [6], [6, 7])
    S(f"s_lshl_b32 s7, s{S_WV}, 4", [7], [S_WV])
    S("s_add_u32 s6, s6, s7", [6], [6, 7])
    S("s_sub_u32 s7, 0x100000, s6", [7], [6])
    c.srd(SRD_Z, 28, 6, "s7")
    V(f"v_lshrrev_b32 v{TMP+2}, 4, v{vLIN}", [TMP+2], [vLIN])
    V(f"v_and_b32 v{TMP+3}, 15, v{TMP+2}", [TMP+3], [TMP+2])
    V(f"v_lshrrev_b32 v{TMP+2}, 4, v{TMP+2}", [TMP+2], [TMP+2])
    V(f"v_lshlrev_b32 v{TMP+3}, 11, v{TMP+3}", [TMP+3], [TMP+3])
    V(f"v_lshl_add_u32 v{TMP+3}, v{TMP+2}, 6, v{TMP+3}", [TMP+3], [TMP+2, TMP+3])
def reduce_run(base):
    c.nlabel += 1
    lab = f"NOPOLL{c.nlabel}"
    g.wait_all()
    S(f"s_cmp_eq_u32 s{S_WV}, 0", [], [S_WV])
    g.salu(f"s_cbranch_scc0 {lab}")
    poll_global(SRD_F, vL4, f"s{S_U}", 8, sleep=int(OPTS.get("psleep", "4")))
    g.label(lab)
    g.salu("s_barrier")
    c.stamp()
    toks = []
    for p in range(8):
        L.ld(base + 8*p, vLIN, SRD_X, p*65536, flags=SC)
        toks.append(L.ld(base + 8*p + 4, vLIN, SRD_X, p*65536 + 1024, flags=SC))
    for p in range(1, 8):
        g.wait_vm(toks[p])
        for e in range(8):
            V(f"v_add_f32 v{base+e}, v{base+e}, v{base+8*p+e}", [base+e], [base+e, base+8*p+e])
    for p in range(4):
        V(f"v_cvt_pk_bf16_f32 v{base+p}, v{base+2*p}, v{base+2*p+1}", [base+p], [base+2*p, base+2*p+1])
    g.bstore(("v", base), 4, TMP+3, SRD_Z, "0")

role(FLB, "B")
ptok = oproj(1, NSPL)
publish(S_FP, ptok)
c.stamp_flush()
g.raw("    s_endpgm")
g.label("A_PATH")
restore(snap); c.nstamp = ns
role(FLA, "A")
ptok = oproj(0, 1)
reduce_setup(0)
publish(S_FP, ptok)
c.stamp()
reduce_run(RING)
reduce_setup(1)
reduce_run(RING + 64)
c.stamp_flush()
g.label("K_END")
g.raw("    s_endpgm")
g.raw('.section .rodata,"a"')
g.raw(kd(KN, 512, 256))
open(OUT, "w").write(g.text())
print("wrote", OUT, len(g.text()), "bytes")
```
